```python
import torch

def _softmax(x, axis=-1):
    return torch.softmax(x, dim=axis)
def _gelu(x):
    return torch.nn.functional.gelu(x, approximate="tanh")
def _silu(x):
    return torch.nn.functional.silu(x)
def _sigmoid(x):
    return torch.sigmoid(x)
def _layernorm(x, axis=-1, eps=1e-5):
    m = x.mean(dim=axis, keepdim=True)
    v = x.var(dim=axis, keepdim=True, unbiased=False)
    return (x - m) / torch.sqrt(v + eps)
def _scatter_add(tgt, idx, src, axis=0):
    return tgt.clone().index_add_(axis, idx, src)
def _segment_sum(src, seg, n):
    out = torch.zeros((n,) + src.shape[1:], dtype=src.dtype)
    return out.index_add_(0, seg, src)
def _pad(x, pw):
    flat = tuple(v for pair in reversed(pw) for v in pair)
    return torch.nn.functional.pad(x, flat)

kernel_name = 'recurrent_scan__spectral_fnet__mixer_token_mlp__prompt'

def setup_inputs():

    _w = (lambda a: (lambda t: t.to(torch.bfloat16) if t.is_floating_point() else t)(torch.as_tensor(a)))
    def _A_setup():
        B, S, D = 1, 2048, 512
        ns = torch.arange(S)[:, None] * torch.arange(S)[None, :]
        nd = torch.arange(D)[:, None] * torch.arange(D)[None, :]
        Ws_re = torch.cos(-2.0 * torch.pi * ns / S).to(float)
        Ws_im = torch.sin(-2.0 * torch.pi * ns / S).to(float)
        Wd_re = torch.cos(-2.0 * torch.pi * nd / D).to(float)
        Wd_im = torch.sin(-2.0 * torch.pi * nd / D).to(float)
        return {
            "x": _w((lambda *s: torch.randn(*s, dtype=torch.bfloat16) * 0.05)(B, S, D)),
            "dft_seq_re": _w(Ws_re),
            "dft_seq_im": _w(Ws_im),
            "dft_hid_re": _w(Wd_re),
            "dft_hid_im": _w(Wd_im),
        }
    _A_in = _A_setup()

    def _B_setup():
        B, S, D, F = 1, 2048, 512, 1792
        return {
            "x": _w((lambda *s: torch.randn(*s, dtype=torch.bfloat16) * 0.05)(B, S, D)),
            "w1": _w((lambda *s: torch.randn(*s, dtype=torch.bfloat16) * 0.2)(S, F) * (S ** -0.5)),
            "b1": _w((lambda *s: torch.randn(*s, dtype=torch.bfloat16) * 3.2)(F) * 0.02),
            "w2": _w((lambda *s: torch.randn(*s, dtype=torch.bfloat16) * 0.05)(F, S) * (F ** -0.5)),
            "b2": _w((lambda *s: torch.randn(*s, dtype=torch.bfloat16) * 0.05)(S) * 0.02),
        }
    _B_in = _B_setup()

    return {
        "A_x": _A_in["x"],
        "A_dft_seq_re": _A_in["dft_seq_re"],
        "A_dft_seq_im": _A_in["dft_seq_im"],
        "A_dft_hid_re": _A_in["dft_hid_re"],
        "A_dft_hid_im": _A_in["dft_hid_im"],
        "B_x": _B_in["x"],
        "B_w1": _B_in["w1"],
        "B_b1": _B_in["b1"],
        "B_w2": _B_in["w2"],
        "B_b2": _B_in["b2"],
    }

def reference(A_x, A_dft_seq_re, A_dft_seq_im, A_dft_hid_re, A_dft_hid_im, B_x, B_w1, B_b1, B_w2, B_b2):
    def _A_ref(x, dft_seq_re, dft_seq_im, dft_hid_re, dft_hid_im):
        a = torch.einsum("bsd,ed->bse", x, dft_hid_re)
        b = torch.einsum("bsd,ed->bse", x, dft_hid_im)
        y = torch.einsum("ts,bse->bte", dft_seq_re, a) - torch.einsum("ts,bse->bte", dft_seq_im, b)
        return y

    def _B_ref(x, w1, b1, w2, b2):
        B, S, D = x.shape
        h = _layernorm(x, axis=-1)
        u = torch.einsum("bsd,sf->bdf", h, w1) + b1
        u = _gelu(u)
        y = torch.einsum("bdf,fs->bds", u, w2) + b2
        return (lambda x, *d: x.permute(*d))(y, 0, 2, 1)

    x = A_x
    xn = _layernorm(x, axis=-1)
    s = _A_ref(xn, A_dft_seq_re, A_dft_seq_im, A_dft_hid_re, A_dft_hid_im)
    g = _silu(_B_ref(xn, B_w1, B_b1, B_w2, B_b2))
    return x + s * g
```

```python
import re

REG = re.compile(r"^(-?)(?:abs\()?([vas])(?:(\d+)|\[(\d+):(\d+)\])\)?$")
TRANS = ("v_exp_f32", "v_log_f32", "v_rcp_f32", "v_rsq_f32", "v_sqrt_f32", "v_sin_f32", "v_cos_f32")


def regs_of(tok):
    tok = tok.strip()
    if tok == "vcc":
        return [("s", 106), ("s", 107)]
    if tok == "vcc_lo":
        return [("s", 106)]
    if tok == "vcc_hi":
        return [("s", 107)]
    if tok == "m0":
        return [("s", 124)]
    if tok == "exec":
        return [("s", 126), ("s", 127)]
    m = REG.match(tok)
    if not m:
        return []
    k = m.group(2)
    if m.group(3) is not None:
        return [(k, int(m.group(3)))]
    return [(k, i) for i in range(int(m.group(4)), int(m.group(5)) + 1)]


def split_ops(rest):
    out, depth, cur = [], 0, ""
    for ch in rest:
        if ch in "[(":
            depth += 1
        if ch in "])":
            depth -= 1
        if ch == "," and depth == 0:
            out.append(cur.strip())
            cur = ""
        else:
            cur += ch
    if cur.strip():
        out.append(cur.strip())
    if out:
        parts = out[-1].split()
        out[-1] = parts[0]
        mods = parts[1:]
    else:
        mods = []
    return out, mods


class Ins:
    def __init__(self, text):
        self.text = text
        p = text.split(None, 1)
        self.op = p[0]
        self.ops, self.mods = split_ops(p[1]) if len(p) > 1 else ([], [])
        op, ops = self.op, self.ops
        R = lambda i: regs_of(ops[i]) if i < len(ops) else []
        allr = lambda a: [r for i in range(a, len(ops)) for r in R(i)]
        self.kind = "other"
        self.w, self.r = [], []
        self.srcC = []
        self.dpp = any(m.startswith(("quad_perm", "row_", "wave_")) for m in self.mods)
        if op.startswith("v_mfma"):
            self.kind = "mfma"
            self.passes = 8 if "32x32" in op else 4
            self.w = R(0)
            self.srcAB = R(1) + R(2)
            self.srcC = R(3)
            self.r = self.srcAB + self.srcC
        elif op.startswith("v_"):
            self.kind = "valu"
            self.w, self.r = R(0), allr(1)
            if op.startswith("v_permlane"):
                self.w = R(0) + R(1)
                self.r = R(0) + R(1)
            if op.startswith(("v_fmac", "v_pk_fmac")) or self.dpp:
                self.r = self.r + R(0)
            if op.startswith("v_cndmask") and len(ops) == 3:
                self.r += regs_of("vcc")
        elif op.startswith("ds_"):
            self.kind = "ds"
            if "read" in op:
                self.w, self.r = R(0), allr(1)
            else:
                self.r = allr(0)
        elif op.startswith("buffer_"):
            self.kind = "vmem"
            self.lds = "lds" in self.mods
            if self.lds:
                self.r = allr(0) + regs_of("m0")
            elif "load" in op:
                self.w, self.r = R(0), allr(1)
                if "d16" in op:
                    self.r += R(0)
            else:
                self.r = allr(0)
                self.data = R(0)
        elif op.startswith(("s_load", "s_memrealtime", "s_memtime")):
            self.kind = "smem"
            self.w, self.r = R(0), allr(1)
        elif op.startswith("s_"):
            self.kind = "salu"
            if op.startswith(("s_cmp", "s_bitcmp", "s_waitcnt", "s_barrier", "s_branch", "s_cbranch", "s_nop",
                              "s_sleep", "s_endpgm", "s_setprio")):
                self.r = allr(0)
            else:
                self.w, self.r = R(0), allr(1)
        self.trans = op.startswith(TRANS)
        self.states = 1
        if op == "s_nop":
            self.states = int(ops[0]) + 1


class Asm:
    def __init__(self):
        self.lines = []
        self.hist = []
        self.vm = []
        self.lg = []
        self.smem = []
        self.n = 0

    def state(self):
        return (list(self.hist), list(self.vm), list(self.lg), list(self.smem))

    def restore(self, st):
        self.hist, self.vm, self.lg, self.smem = (list(x) for x in st)

    def raw(self, text):
        self.lines.append(text)

    def label(self, name):
        self.lines.append(name + ":")

    def comment(self, text):
        self.lines.append("    ; " + text)

    def _put(self, ins):
        self.lines.append("    " + ins.text)
        self.hist.append(ins)
        self.hist = self.hist[-24:]
        self.n += 1

    def _wait(self, vm=None, lg=None):
        parts = []
        if vm is not None:
            parts.append(f"vmcnt({min(vm, 63)})")
            self.vm = self.vm[len(self.vm) - min(vm, 63):] if min(vm, 63) else []
        if lg is not None:
            if self.smem:
                lg = 0
                self.smem = []
            parts.append(f"lgkmcnt({min(lg, 15)})")
            self.lg = self.lg[len(self.lg) - min(lg, 15):] if min(lg, 15) else []
        if parts:
            self._put(Ins("s_waitcnt " + " ".join(parts)))

    @staticmethod
    def _need(queue, pred):
        idx = [i for i, e in enumerate(queue) if pred(e)]
        return None if not idx else len(queue) - 1 - idx[-1]

    def wait_vm(self, tag):
        self._wait(vm=self._need(self.vm, lambda e: e[0] == tag))

    def wait_lg(self, tag):
        self._wait(lg=self._need(self.lg, lambda e: e[0] == tag))

    def wait_all(self, vm=True, lg=True):
        self._wait(vm=0 if vm and self.vm else None, lg=0 if lg and (self.lg or self.smem) else None)

    def drained_vm(self):
        self.vm = []

    def _dist_need(self, ins):
        need = 0
        d = 0
        rs, ws = set(ins.r), set(ins.w)
        for p in reversed(self.hist):
            pw = set(p.w)
            req = 0
            if p.kind == "valu":
                vw = {x for x in pw if x[0] != "s"}
                sw = {x for x in pw if x[0] == "s"}
                if ins.kind == "mfma" and vw & rs:
                    req = 2
                if ins.kind == "valu":
                    if vw & rs and (ins.dpp or ins.op.startswith("v_permlane")):
                        req = max(req, 2)
                    if vw & rs and ins.op.startswith(("v_readlane", "v_readfirstlane")):
                        req = max(req, 1)
                    if p.trans and not ins.trans and vw & rs:
                        req = max(req, 1)
                    if sw & rs:
                        req = max(req, 4 if ins.op.startswith(("v_readlane", "v_writelane")) else 2)
                if ins.kind == "vmem" and sw & rs:
                    req = max(req, 5)
                if ins.kind in ("salu", "smem") and sw & rs:
                    req = max(req, 1)
            elif p.kind == "mfma":
                big = p.passes == 8
                if ins.kind == "mfma":
                    if pw & set(ins.srcAB):
                        req = 12 if big else 8
                    elif pw & set(ins.srcC) and not (p.w == ins.srcC and p.passes == ins.passes):
                        req = 10 if big else 6
                    elif pw & ws and not (p.w == ins.srcC):
                        req = 10 if big else 6
                elif ins.kind in ("valu", "ds", "vmem") and pw & (rs | ws):
                    req = 12 if big else 8
                if ins.kind == "valu" and set(p.srcC) & ws:
                    req = max(req, 7 if big else 3)
            elif p.kind == "salu":
                if ("s", 124) in pw and ins.kind == "vmem" and getattr(ins, "lds", False):
                    req = 1
            elif p.kind == "vmem":
                if hasattr(p, "data") and len(p.data) >= 3 and set(p.data) & ws:
                    req = 2
            need = max(need, req - d)
            d += p.states
            if d >= 20:
                break
        return need

    def __call__(self, text, tag=None):
        for t in text.strip().split("\n"):
            t = t.split(";")[0].strip()
            if t:
                self._one(t, tag)

    def _one(self, text, tag):
        ins = Ins(text)
        touched = set(ins.r) | set(ins.w)
        nv = self._need(self.vm, lambda e: touched & e[1])
        nl = self._need(self.lg, lambda e: touched & e[1])
        if touched & set(self.smem):
            nl = 0
        if nv is not None or nl is not None:
            self._wait(vm=nv, lg=nl)
        need = self._dist_need(ins)
        if need > 0:
            self._put(Ins(f"s_nop {need - 1}"))
        self._put(ins)
        if ins.kind == "vmem":
            self.vm.append((tag, set(ins.w)))
        elif ins.kind == "ds":
            self.lg.append((tag, set(ins.w)))
        elif ins.kind == "smem":
            self.smem += ins.w

    def text(self):
        return "\n".join(self.lines) + "\n"


def v(a, n=1):
    return f"v{a}" if n == 1 else f"v[{a}:{a + n - 1}]"


def a_(a, n=1):
    return f"a{a}" if n == 1 else f"a[{a}:{a + n - 1}]"


def s(a, n=1):
    return f"s{a}" if n == 1 else f"s[{a}:{a + n - 1}]"
```

```python
import struct, sys
from asmgen import Asm, v, a_, s

NAME = "recurrent_scan__spectral_fnet__mixer_token_mlp__prompt"

DEFAULTS = dict(
    diag=0,
    ring=16,
    rotc=1,
    rotw=1,
    w1_first=7,
    w1_second=6,
    w2_pre=8,
    ack_a=12,
    codepf=1,
    spin=200000,
    sleep=0,
)

FH, FZ, FU, FS = 0x10000, 0x30000, 0x50000, 0x88000
H_, Z_, U_, S_, DG = 0x100000, 0x300000, 0x500000, 0x700000, 0x800000
WS_BYTES = 0x900000
R_ = 131072
XN, HH, ZST = R_, R_ + 8704, R_ + 17408
ROWB = 1088

sX, sW1, sW2, sWS, sOUT, sB1, sB2, sCODE = 4, 8, 12, 16, 20, 24, 28, 32
sW, sNONCE, sD, sF, sT, sJQ, sLDS, sCNT = 36, 37, 38, 39, 40, 41, 42, 43
sA1, sD1, sA2, sD2 = 44, 52, 60, 68
sT0, sT1, sT2, sT3 = 76, 77, 78, 79
sP = 80
sQ = 82
sSK = 84
sMIR = 88
sM0, sM1 = 90, 92
sSTAMP = 94
vLANE, vNONCE, vZERO = 1, 2, 3
vDMA1, vDMA2 = 4, 6
vTR1, vTR2 = 8, 10
vA1, vA2 = 12, 14
vRW, vRR = 16, 19
vB1 = 20
vPOLL, vPA, vPB = 28, 29, 30
vUST = 31
vXO, vS0, vS1, vB2, vZM = 32, 33, 35, 37, 38
vSTAMP = 39
vT = 40
ACC = (64, 96)
RING = 128
vE = 208


def f32(x):
    return "0x%08x" % struct.unpack("<I", struct.pack("<f", x))[0]


class Gen:
    def __init__(self, **kw):
        self.c = dict(DEFAULTS)
        self.c.update(kw)
        self.e = Asm()
        self.nlab = 0
        self.nstamp = 0

    def lab(self, base):
        self.nlab += 1
        return f"L_{base}_{self.nlab}"

    def stamp(self, idx):
        if not self.c["diag"]:
            return
        e = self.e
        e(f"s_memrealtime {s(sSTAMP, 2)}")
        e.wait_all(vm=False)
        e(f"v_writelane_b32 {v(vSTAMP)}, {s(sSTAMP)}, {idx}")

    def flag_store(self, soff):
        e = self.e
        e("s_mov_b64 exec, 1")
        e(f"buffer_store_dword {v(vNONCE)}, {v(vZERO)}, {s(sWS, 4)}, {s(soff)} offen sc1", tag="flag")
        e("s_mov_b64 exec, -1")

    def poll_blocking(self, loads):
        e = self.e
        top, done = self.lab("poll"), self.lab("polled")
        e(f"s_mov_b32 {s(sCNT)}, {self.c['spin']}")
        e.label(top)
        for d, a, so in loads:
            e(f"buffer_load_dword {v(d)}, {v(a)}, {s(sWS, 4)}, {so} offen sc1")
        e.wait_all(lg=False)
        self.poll_test([d for d, _, _ in loads])
        e(f"s_cbranch_vccz {done}")
        if self.c["sleep"]:
            e(f"s_sleep {self.c['sleep']}")
        e(f"s_sub_u32 {s(sCNT)}, {s(sCNT)}, 1")
        e(f"s_cbranch_scc0 {top}")
        e.label(done)

    def poll_test(self, regs):
        e = self.e
        if len(regs) == 1:
            e(f"v_cmp_ne_u32 vcc, {v(regs[0])}, {v(vNONCE)}")
            return
        for r in regs:
            e(f"v_xor_b32 {v(r)}, {v(r)}, {v(vNONCE)}")
        for r in regs[1:]:
            e(f"v_or_b32 {v(regs[0])}, {v(regs[0])}, {v(r)}")
        e(f"v_cmp_ne_u32 vcc, 0, {v(regs[0])}")

    def dma(self, which, st, slot):
        e = self.e
        srd, va, tab, mult = (sW1, vDMA1, sD1, 7168) if which == 1 else (sW2, vDMA2, sD2, 65536)
        so = tab + st // 4
        if st % 4:
            e(f"s_add_u32 {s(sT3)}, {s(so)}, {(st % 4) * mult}")
            so = sT3
        for kq in range(2):
            e(f"s_add_u32 m0, {s(sLDS)}, {slot * 2048 + kq * 1024}")
            e(f"buffer_load_dwordx4 {v(va + kq)}, {s(srd, 4)}, {s(so)} offen lds", tag=("w", which, st))

    def trl(self, which, st, slot):
        va = vTR1 if which == 1 else vTR2
        return [(f"ds_read_b64_tr_b16 {a_(8 * st + 4 * pt + 2 * a, 2)}, {v(va + pt)} offset:{slot * 2048 + a * 512}",
                 ("tr", slot)) for pt in range(2) for a in range(2)]

    def tr(self, which, st, slot):
        e = self.e
        e.wait_vm(("w", which, st))
        for t, tag in self.trl(which, st, slot):
            e(t, tag=tag)

    def prologue(self):
        e, c = self.e, self.c
        e("s_cmp_ge_u32 s2, 256")
        e("s_cbranch_scc1 L_end")
        if c["diag"]:
            e(f"v_mov_b32 {v(vSTAMP)}, 0")
        self.stamp(0)
        for reg, off in ((sX, 0), (sWS, 96), (sW1, 48), (sB1, 56), (sW2, 64), (sB2, 72), (sOUT, 80)):
            e(f"s_load_dwordx2 {s(reg, 2)}, s[0:1], {off}")
        for reg, n in ((sX, 2097152), (sW1, 7340032), (sW2, 7340032), (sWS, WS_BYTES), (sOUT, 2097152),
                       (sB1, 3584), (sB2, 4096)):
            e(f"s_mov_b32 {s(reg + 2)}, {n}")
            e(f"s_mov_b32 {s(reg + 3)}, 0x20000")
        e(f"v_lshrrev_b32 {v(vT)}, 6, v0")
        e(f"v_and_b32 {v(vLANE)}, 63, v0")
        e(f"v_readfirstlane_b32 {s(sW)}, {v(vT)}")
        e(f"v_lshlrev_b32 {v(vT + 1)}, 4, {v(vLANE)}")
        e(f"s_lshr_b32 {s(sT0)}, s2, 6")
        e(f"s_lshl_b32 {s(sT0)}, {s(sT0)}, 19")
        e(f"s_and_b32 {s(sT1)}, s2, 63")
        e(f"s_lshl_b32 {s(sT1)}, {s(sT1)}, 10")
        e(f"s_add_u32 {s(sT0)}, {s(sT0)}, {s(sT1)}")
        e(f"s_lshl_b32 {s(sT1)}, {s(sW)}, 17")
        e(f"s_add_u32 {s(sT0)}, {s(sT0)}, {s(sT1)}")
        e(f"s_add_u32 {s(sT1)}, {s(sT0)}, 65536")
        e.wait_all()
        e(f"buffer_load_dwordx4 v[64:67], {v(vT + 1)}, {s(sX, 4)}, {s(sT0)} offen")
        e(f"buffer_load_dwordx4 v[68:71], {v(vT + 1)}, {s(sX, 4)}, {s(sT1)} offen")
        e(f"s_load_dword {s(sNONCE)}, {s(sWS, 2)}, 0")
        e(f"s_lshr_b32 {s(sT0)}, s2, 3")
        e(f"s_and_b32 {s(sT1)}, {s(sT0)}, 3")
        e(f"s_lshr_b32 {s(sJQ)}, {s(sT0)}, 2")
        e(f"s_and_b32 {s(sT2)}, s2, 1")
        e(f"s_lshl_b32 {s(sD)}, {s(sT2)}, 2")
        e(f"s_add_u32 {s(sD)}, {s(sD)}, {s(sT1)}")
        e(f"s_bfe_u32 {s(sT0)}, s2, 0x20001")
        e(f"s_mul_i32 {s(sF)}, {s(sT0)}, 7")
        e(f"s_add_u32 {s(sF)}, {s(sF)}, {s(sJQ)}")
        e(f"s_lshl_b32 {s(sT)}, {s(sT0)}, 3")
        e(f"s_add_u32 {s(sT)}, {s(sT)}, {s(sJQ)}")
        e(f"s_lshl_b32 {s(sLDS)}, {s(sW)}, 15")
        e(f"s_lshl_b32 {s(sT1)}, {s(sT1)}, 1")
        e(f"s_add_u32 {s(sT1)}, {s(sT1)}, {s(sT2)}")
        e(f"s_mul_i32 {s(sT1)}, {s(sT1)}, {c['rotw']}")
        e(f"s_mul_i32 {s(sT2)}, {s(sJQ)}, {c['rotc']}")
        e(f"s_add_u32 {s(sT1)}, {s(sT1)}, {s(sT2)}")
        for k in range(8):
            e(f"s_add_u32 {s(sT0)}, {s(sT1)}, {k}")
            e(f"s_and_b32 {s(sT0)}, {s(sT0)}, 7")
            e(f"s_lshl_b32 {s(sA1 + k)}, {s(sT0)}, 12")
            e(f"s_mul_i32 {s(sD1 + k)}, {s(sT0)}, {4 * 7168}")
        t = vT + 2
        e(f"v_lshrrev_b32 {v(t)}, 3, {v(vLANE)}")
        e(f"v_and_b32 {v(t + 1)}, 7, {v(vLANE)}")
        e(f"v_bfe_u32 {v(t + 2)}, {v(vLANE)}, 4, 1")
        e(f"v_lshlrev_b32 {v(t + 2)}, 2, {v(t + 2)}")
        e(f"v_xor_b32 {v(t + 1)}, {v(t + 1)}, {v(t + 2)}")
        e(f"v_lshlrev_b32 {v(t + 1)}, 4, {v(t + 1)}")
        e(f"s_mul_i32 {s(sT0)}, {s(sW)}, {512 * 3584}")
        e(f"s_lshl_b32 {s(sT2)}, {s(sF)}, 7")
        e(f"s_add_u32 {s(sT0)}, {s(sT0)}, {s(sT2)}")
        e(f"v_mul_u32_u24 {v(t + 2)}, {64 * 3584}, {v(t)}")
        e(f"v_add3_u32 {v(vDMA1)}, {v(t + 2)}, {v(t + 1)}, {s(sT0)}")
        e(f"v_add_u32 {v(vDMA1 + 1)}, 3584, {v(vDMA1)}")
        e(f"v_lshrrev_b32 {v(t + 2)}, 2, {v(t)}")
        e(f"v_and_b32 {v(t + 3)}, 3, {v(t)}")
        e(f"v_lshl_add_u32 {v(t + 2)}, {v(t + 2)}, 3, {v(t + 3)}")
        e(f"v_lshlrev_b32 {v(t + 2)}, 12, {v(t + 2)}")
        e(f"s_mul_i32 {s(sT0)}, {s(sW)}, {448 * 4096}")
        e(f"s_lshl_b32 {s(sT2)}, {s(sT)}, 7")
        e(f"s_add_u32 {s(sT0)}, {s(sT0)}, {s(sT2)}")
        e(f"v_add3_u32 {v(vDMA2)}, {v(t + 2)}, {v(t + 1)}, {s(sT0)}")
        e(f"v_add_u32 {v(vDMA2 + 1)}, {4 * 4096}, {v(vDMA2)}")
        for k in range(7):
            e(f"s_add_u32 {s(sT0)}, {s(sT1)}, {k}")
            for lim in (14, 7):
                e(f"s_cmp_ge_u32 {s(sT0)}, {lim}")
                e(f"s_cselect_b32 {s(sT2)}, {lim}, 0")
                e(f"s_sub_u32 {s(sT0)}, {s(sT0)}, {s(sT2)}")
            e(f"s_lshl_b32 {s(sA2 + k)}, {s(sT0)}, 12")
            e(f"s_lshl_b32 {s(sD2 + k)}, {s(sT0)}, 18")
        e(f"s_cmp_eq_u32 {s(sJQ)}, 7")
        e("s_cbranch_scc1 L_first2")
        st0 = e.state()
        for st in range(c["w1_first"]):
            self.dma(1, st, st)
        e("s_branch L_first")
        st1 = e.state()
        e.restore(st0)
        e.label("L_first2")
        for st in range(c["w1_first"]):
            self.dma(2, st, st)
        e.restore(st1)
        e.label("L_first")
        if c["codepf"]:
            e(f"s_getpc_b64 {s(sCODE, 2)}")
            e.label("L_pc")
            e(f"s_mov_b32 {s(sCODE + 2)}, L_code_end-L_pc")
            e(f"s_mov_b32 {s(sCODE + 3)}, 0x20000")
            e(f"s_lshr_b32 {s(sT0)}, s2, 3")
            e(f"s_lshl_b32 {s(sT0)}, {s(sT0)}, 2")
            e(f"s_add_u32 {s(sT0)}, {s(sT0)}, {s(sW)}")
            e(f"s_lshl_b32 {s(sT0)}, {s(sT0)}, 8")
            e(f"v_lshlrev_b32 {v(t + 3)}, 7, {v(vLANE)}")
            e("s_mov_b64 exec, 3")
            e(f"buffer_load_dword {v(vPA)}, {v(t + 3)}, {s(sCODE, 4)}, {s(sT0)} offen")
            e("s_mov_b64 exec, -1")
        e(f"v_bfe_u32 {v(t)}, {v(vLANE)}, 2, 2")
        e(f"v_lshlrev_b32 {v(t + 1)}, 7, {v(t)}")
        e(f"v_lshrrev_b32 {v(t + 2)}, 5, {v(vLANE)}")
        e(f"v_lshl_add_u32 {v(t + 1)}, {v(t + 2)}, 10, {v(t + 1)}")
        e(f"v_add_u32 {v(t + 1)}, {s(sLDS)}, {v(t + 1)}")
        e(f"v_bfe_u32 {v(t + 2)}, {v(vLANE)}, 4, 1")
        e(f"v_lshlrev_b32 {v(t + 2)}, 5, {v(t + 2)}")
        e(f"v_and_b32 {v(t + 3)}, 3, {v(vLANE)}")
        e(f"v_lshl_add_u32 {v(t + 2)}, {v(t + 3)}, 3, {v(t + 2)}")
        e(f"v_lshrrev_b32 {v(t)}, 1, {v(t)}")
        e(f"v_lshl_add_u32 {v(t + 2)}, {v(t)}, 6, {v(t + 2)}")
        e(f"s_lshl_b32 {s(sT0)}, {s(sW)}, 5")
        e(f"v_xor_b32 {v(t + 3)}, {s(sT0)}, {v(t + 2)}")
        e(f"v_add_u32 {v(vTR1)}, {v(t + 1)}, {v(t + 3)}")
        e(f"v_xor_b32 {v(vTR1 + 1)}, 64, {v(vTR1)}")
        e(f"s_and_b32 {s(sT0)}, {s(sT0)}, 64")
        e(f"v_xor_b32 {v(t + 3)}, {s(sT0)}, {v(t + 2)}")
        e(f"v_add_u32 {v(vTR2)}, {v(t + 1)}, {v(t + 3)}")
        e(f"v_xor_b32 {v(vTR2 + 1)}, 64, {v(vTR2)}")
        e(f"v_mov_b32 {v(vZERO)}, 0")

    def hid_consts(self):
        e = self.e
        B1c, B1s, TWC, TWS, A2r, A2i, Asr, Asi, ZA = 128, 132, 136, 140, 144, 148, 152, 156, 160
        n, q, fn, fq4, base, ph = vT + 2, vT + 3, vT + 4, vT + 5, vT + 6, vT + 7
        th, c0, s0 = 96, 104, 112
        e(f"v_and_b32 {v(n)}, 15, {v(vLANE)}")
        e(f"v_lshrrev_b32 {v(q)}, 4, {v(vLANE)}")
        e(f"v_cvt_f32_ubyte0 {v(fn)}, {v(n)}")
        e(f"v_cvt_f32_ubyte0 {v(fq4)}, {v(q)}")
        e(f"v_mul_f32 {v(fq4)}, 4.0, {v(fq4)}")
        e(f"v_cmp_eq_u32 {s(sM0, 2)}, 0, {v(n)}")
        e(f"v_cmp_lt_u32 {s(sM1, 2)}, 7, {v(n)}")

        def angles(freq, consts, dst, phase=None):
            e(f"v_mul_f32 {v(base)}, {v(fq4)}, {v(freq)}")
            if phase is not None:
                e(f"v_add_f32 {v(base)}, {v(base)}, {v(phase)}")
            for i, k in enumerate(consts):
                e(f"v_fmamk_f32 {v(dst + i)}, {v(freq)}, {f32(k)}, {v(base)}")

        fr = vT + 8
        d1 = [0, 1, 2, 3, 16, 17, 18, 19]
        e(f"v_mul_f32 {v(fr)}, {f32(1 / 32)}, {v(fn)}")
        angles(fr, d1, th)
        for i in range(8):
            e(f"v_cos_f32 {v(c0 + i)}, {v(th + i)}")
        for i in range(4):
            e(f"v_cvt_pk_bf16_f32 {v(B1c + i)}, {v(c0 + 2 * i)}, {v(c0 + 2 * i + 1)}")
        e(f"v_cndmask_b32 {v(fr)}, {v(fr)}, 0.5, {s(sM0, 2)}")
        e(f"v_mov_b32 {v(ph)}, {f32(0.25)}")
        e(f"v_cndmask_b32 {v(ph)}, {v(ph)}, 0, {s(sM0, 2)}")
        angles(fr, d1, th, ph)
        for i in range(8):
            e(f"v_cos_f32 {v(c0 + i)}, {v(th + i)}")
        for i in range(4):
            e(f"v_cvt_pk_bf16_f32 {v(B1s + i)}, {v(c0 + 2 * i)}, {v(c0 + 2 * i + 1)}")
        e(f"v_mul_f32 {v(fr)}, {f32(1 / 512)}, {v(fn)}")
        angles(fr, range(4), th)
        for i in range(4):
            e(f"v_cos_f32 {v(TWC + i)}, {v(th + i)}")
            e(f"v_sin_f32 {v(TWS + i)}, {v(th + i)}")
        e(f"v_mul_f32 {v(fr)}, {f32(1 / 16)}, {v(fn)}")
        angles(fr, range(4), th)
        for i in range(4):
            e(f"v_cos_f32 {v(c0 + i)}, {v(th + i)}")
            e(f"v_sin_f32 {v(s0 + i)}, {v(th + i)}")
        e(f"v_mov_b32 {v(ph)}, 0x80008000")
        e(f"v_cndmask_b32 {v(ph)}, 0, {v(ph)}, {s(sM1, 2)}")
        for i in range(2):
            e(f"v_cvt_pk_bf16_f32 {v(A2r + i)}, {v(c0 + 2 * i)}, {v(c0 + 2 * i + 1)}")
            e(f"v_cvt_pk_bf16_f32 {v(A2r + 2 + i)}, {v(s0 + 2 * i)}, {v(s0 + 2 * i + 1)}")
            e(f"v_cvt_pk_bf16_f32 {v(A2i + i)}, -{v(s0 + 2 * i)}, -{v(s0 + 2 * i + 1)}")
            e(f"v_xor_b32 {v(A2i + i)}, {v(A2i + i)}, {v(ph)}")
            e(f"v_xor_b32 {v(A2i + 2 + i)}, {v(A2r + i)}, {v(ph)}")
        e(f"v_add_f32 {v(th)}, {f32(1 / 16)}, {v(fr)}")
        e(f"v_add_f32 {v(th + 1)}, {f32(-15 / 32)}, {v(fr)}")
        e(f"v_cndmask_b32 {v(fr)}, {v(th)}, {v(th + 1)}, {s(sM1, 2)}")
        angles(fr, range(4), th)
        for i in range(4):
            e(f"v_cos_f32 {v(c0 + i)}, {v(th + i)}")
            e(f"v_sin_f32 {v(s0 + i)}, {v(th + i)}")
        for i in range(2):
            e(f"v_cvt_pk_bf16_f32 {v(th + i)}, {v(c0 + 2 * i)}, {v(c0 + 2 * i + 1)}")
            e(f"v_cvt_pk_bf16_f32 {v(th + 2 + i)}, -{v(s0 + 2 * i)}, -{v(s0 + 2 * i + 1)}")
        for i in range(2):
            e(f"v_cndmask_b32 {v(Asr + i)}, {v(th + i)}, 0, {s(sM1, 2)}")
            e(f"v_cndmask_b32 {v(Asr + 2 + i)}, 0, {v(th + i)}, {s(sM1, 2)}")
            e(f"v_cndmask_b32 {v(Asi + i)}, {v(th + 2 + i)}, 0, {s(sM1, 2)}")
            e(f"v_cndmask_b32 {v(Asi + 2 + i)}, 0, {v(th + 2 + i)}, {s(sM1, 2)}")
        e(f"v_cmp_lt_u32 {s(sM1, 2)}, 1, {v(q)}")
        e(f"s_lshl_b32 {s(sT0)}, {s(sW)}, 2")
        e(f"s_add_u32 {s(sT0)}, {s(sT0)}, {ZST}")
        for j in range(4):
            m32, t1, t2 = th, th + 1, th + 2
            e(f"v_lshlrev_b32 {v(m32)}, 7, {v(q)}")
            e(f"v_add_u32 {v(m32)}, {32 * j}, {v(m32)}")
            e(f"v_add_u32 {v(t1)}, {v(m32)}, {v(n)}")
            e(f"v_sub_u32 {v(t2)}, 512, {v(t1)}")
            e(f"v_cndmask_b32 {v(t1)}, {v(t1)}, {v(t2)}, {s(sM1, 2)}")
            e(f"v_add_u32 {v(t2)}, 32, {v(m32)}")
            e(f"v_and_b32 {v(t2)}, 255, {v(t2)}")
            e(f"v_subrev_u32 {v(m32)}, 240, {v(m32)}")
            e(f"v_cndmask_b32 {v(t2)}, {v(t2)}, {v(m32)}, {s(sM1, 2)}")
            e(f"v_cndmask_b32 {v(t1)}, {v(t1)}, {v(t2)}, {s(sM0, 2)}")
            e(f"v_lshl_add_u32 {v(ZA + j)}, {v(t1)}, 5, {s(sT0)}")

    def ln_stats(self, a, b, pivot):
        e = self.e
        t = vT
        ta, tb = 96, 104
        if pivot:
            e(f"v_readlane_b32 {s(sP)}, {v(a)}, 0")
            e(f"v_readlane_b32 {s(sP + 1)}, {v(b)}, 0")
            for k in range(4):
                e(f"v_pk_add_f32 {v(ta + 2 * k, 2)}, {v(a + 2 * k, 2)}, {s(sP, 2)} op_sel_hi:[1,0] neg_lo:[0,1] neg_hi:[0,1]")
                e(f"v_pk_add_f32 {v(tb + 2 * k, 2)}, {v(b + 2 * k, 2)}, {s(sP, 2)} op_sel:[0,1] op_sel_hi:[1,1] neg_lo:[0,1] neg_hi:[0,1]")
            a, b = ta, tb
        sa, qa, sb, qb = t, t + 4, t + 8, t + 12
        for (x, sm, sq) in ((a, sa, qa), (b, sb, qb)):
            e(f"v_pk_add_f32 {v(sm, 2)}, {v(x, 2)}, {v(x + 2, 2)}")
            e(f"v_pk_mul_f32 {v(sq, 2)}, {v(x, 2)}, {v(x, 2)}")
            e(f"v_pk_add_f32 {v(sm + 2, 2)}, {v(x + 4, 2)}, {v(x + 6, 2)}")
            e(f"v_pk_mul_f32 {v(sq + 2, 2)}, {v(x + 4, 2)}, {v(x + 4, 2)}")
        for (x, sm, sq) in ((a, sa, qa), (b, sb, qb)):
            e(f"v_pk_fma_f32 {v(sq, 2)}, {v(x + 2, 2)}, {v(x + 2, 2)}, {v(sq, 2)}")
            e(f"v_pk_fma_f32 {v(sq + 2, 2)}, {v(x + 6, 2)}, {v(x + 6, 2)}, {v(sq + 2, 2)}")
            e(f"v_pk_add_f32 {v(sm, 2)}, {v(sm, 2)}, {v(sm + 2, 2)}")
        for (sm, sq) in ((sa, qa), (sb, qb)):
            e(f"v_pk_add_f32 {v(sq, 2)}, {v(sq, 2)}, {v(sq + 2, 2)}")
            e(f"v_add_f32 {v(sm)}, {v(sm)}, {v(sm + 1)}")
        e(f"v_add_f32 {v(qa)}, {v(qa)}, {v(qa + 1)}")
        e(f"v_add_f32 {v(qb)}, {v(qb)}, {v(qb + 1)}")
        e(f"v_permlane32_swap_b32 {v(sa)}, {v(sb)}")
        e(f"v_permlane32_swap_b32 {v(qa)}, {v(qb)}")
        e(f"v_add_f32 {v(sa)}, {v(sa)}, {v(sb)}")
        e(f"v_add_f32 {v(qa)}, {v(qa)}, {v(qb)}")
        e(f"v_permlane16_swap_b32 {v(sa)}, {v(qa)}")
        e(f"v_add_f32 {v(sa)}, {v(sa)}, {v(qa)}")
        for m in ("quad_perm:[1,0,3,2]", "quad_perm:[2,3,0,1]", "row_half_mirror", "row_mirror"):
            e(f"v_add_f32_dpp {v(sa)}, {v(sa)}, {v(sa)} {m} row_mask:0xf bank_mask:0xf")
        e(f"v_mov_b32 {v(qa)}, {v(sa)}")
        e(f"v_permlane16_swap_b32 {v(sa)}, {v(qa)}")
        e(f"v_mul_f32 {v(sa)}, {f32(1 / 512)}, {v(sa)}")
        e(f"v_mul_f32 {v(qa)}, {f32(1 / 512)}, {v(qa)}")
        e(f"v_fma_f32 {v(qa)}, -{v(sa)}, {v(sa)}, {v(qa)}")
        e(f"v_max_f32 {v(qa)}, 0, {v(qa)}")
        if pivot:
            e(f"v_mov_b32 {v(sb)}, {s(sP)}")
            e(f"v_mov_b32 {v(qb)}, {s(sP + 1)}")
            e(f"v_permlane32_swap_b32 {v(sb)}, {v(qb)}")
            e(f"v_add_f32 {v(sa)}, {v(sa)}, {v(sb)}")
        e(f"v_cvt_pk_bf16_f32 {v(qa)}, 0, {v(qa)}")
        e(f"v_cvt_pk_bf16_f32 {v(sa)}, 0, {v(sa)}")
        e(f"v_add_f32 {v(qa)}, {f32(1e-5)}, {v(qa)}")
        e(f"v_cvt_pk_bf16_f32 {v(qa)}, 0, {v(qa)}")
        e(f"v_sqrt_f32 {v(qa)}, {v(qa)}")
        e(f"v_readlane_b32 {s(sP)}, {v(sa)}, 0")
        e(f"v_cvt_pk_bf16_f32 {v(qa)}, 0, {v(qa)}")
        e(f"v_rcp_f32 {v(qa)}, {v(qa)}")
        e(f"v_readlane_b32 {s(sP + 1)}, {v(sa)}, 32")
        e(f"v_readlane_b32 {s(sQ)}, {v(qa)}, 0")
        e(f"v_readlane_b32 {s(sQ + 1)}, {v(qa)}, 32")

    def ln_apply(self, a, b, pa, pb):
        e = self.e
        sel = ("op_sel_hi:[1,0]", "op_sel:[0,1] op_sel_hi:[1,1]")
        for k in range(4):
            for r, x in enumerate((a, b)):
                e(f"v_pk_add_f32 {v(x + 2 * k, 2)}, {v(x + 2 * k, 2)}, {s(sP, 2)} {sel[r]} neg_lo:[0,1] neg_hi:[0,1]")
        for k in range(8):
            for x in (a, b):
                e(f"v_cvt_pk_bf16_f32 {v(x + k)}, 0, {v(x + k)}")
        for k in range(4):
            for r, x in enumerate((a, b)):
                e(f"v_pk_mul_f32 {v(x + 2 * k, 2)}, {v(x + 2 * k, 2)}, {s(sQ, 2)} {sel[r]}")
        for k in range(4):
            for x, p in ((a, pa), (b, pb)):
                e(f"v_cvt_pk_bf16_f32 {v(p + k)}, {v(x + 2 * k)}, {v(x + 2 * k + 1)}")

    def unpack(self, p, x, n=4):
        e = self.e
        for k in range(n):
            e(f"v_lshlrev_b32 {v(x + 2 * k)}, 16, {v(p + k)}")
            e(f"v_and_b32 {v(x + 2 * k + 1)}, 0xffff0000, {v(p + k)}")

    def phase1(self):
        e, c = self.e, self.c
        a, b, pa, pb = 72, 80, 64, 68
        wr, hr, hs = vT + 16, vT + 17, vT + 18
        e(f"s_mul_i32 {s(sT0)}, {s(sW)}, {2 * ROWB}")
        e(f"s_add_u32 {s(sT0)}, {s(sT0)}, {XN}")
        e(f"v_lshl_add_u32 {v(wr)}, {v(vLANE)}, 4, {s(sT0)}")
        e(f"v_bfe_u32 {v(vT)}, {v(vLANE)}, 2, 2")
        e(f"v_mul_u32_u24 {v(vT)}, {ROWB}, {v(vT)}")
        e(f"v_lshrrev_b32 {v(vT + 1)}, 4, {v(vLANE)}")
        e(f"v_lshl_add_u32 {v(vT)}, {v(vT + 1)}, 5, {v(vT)}")
        e(f"v_and_b32 {v(vT + 1)}, 3, {v(vLANE)}")
        e(f"v_lshl_add_u32 {v(vT)}, {v(vT + 1)}, 3, {v(vT)}")
        e(f"s_lshl_b32 {s(sT0)}, {s(sW)}, 8")
        e(f"s_add_u32 {s(sT0)}, {s(sT0)}, {HH}")
        e(f"v_add_u32 {v(hr)}, {s(sT0)}, {v(vT)}")
        e(f"v_lshrrev_b32 {v(vT)}, 5, {v(vLANE)}")
        e(f"v_and_b32 {v(vT + 1)}, 31, {v(vLANE)}")
        e(f"v_lshlrev_b32 {v(vT + 1)}, 4, {v(vT + 1)}")
        e(f"v_lshl_add_u32 {v(hs)}, {v(vT)}, 17, {v(vT + 1)}")
        e.wait_all(vm=False)
        e(f"s_mul_i32 {s(sNONCE)}, {s(sNONCE)}, 0x9e3779b1")
        e(f"s_add_u32 {s(sNONCE)}, {s(sNONCE)}, 0x7f4a7c15")
        e(f"v_mov_b32 {v(vNONCE)}, {s(sNONCE)}")
        self.unpack(pa, a)
        self.stamp(1)
        self.unpack(pb, b)
        self.ln_stats(a, b, True)
        self.ln_apply(a, b, pa, pb)
        e(f"ds_write_b128 {v(wr)}, {v(pa, 4)}")
        e(f"ds_write_b128 {v(wr)}, {v(pb, 4)} offset:{ROWB}")
        self.unpack(pa, a)
        self.unpack(pb, b)
        self.ln_stats(a, b, False)
        self.ln_apply(a, b, 88, 92)
        e(f"ds_write_b128 {v(wr)}, {v(88, 4)} offset:{HH - XN}")
        e(f"ds_write_b128 {v(wr)}, {v(92, 4)} offset:{HH - XN + ROWB}")
        e(f"s_lshl_b32 {s(sT0)}, {s(sW)}, 19")
        e(f"s_lshl_b32 {s(sT1)}, s2, 9")
        e(f"s_add_u32 {s(sT0)}, {s(sT0)}, {s(sT1)}")
        e(f"s_add_u32 {s(sT0)}, {s(sT0)}, {H_}")
        e(f"s_add_u32 {s(sT1)}, {s(sT0)}, 262144")
        e.wait_all(vm=False)
        e("s_barrier")
        for h in range(2):
            for r in range(2):
                e(f"ds_read_b64_tr_b16 {v(64 + 4 * h + 2 * r, 2)}, {v(hr)} offset:{h * 128 + r * 4 * ROWB}")
        e(f"v_lshlrev_b32 {v(vT)}, 3, {v(vLANE)}")
        e(f"v_sub_u32 {v(wr)}, {v(wr)}, {v(vT)}")
        for r in range(2):
            for h in range(2):
                e(f"ds_read_b64_tr_b16 {v(72 + 4 * r + 2 * h, 2)}, {v(wr)} offset:{r * ROWB + h * 512}")
        e(f"buffer_store_dwordx4 v[64:67], {v(hs)}, {s(sWS, 4)}, {s(sT0)} offen sc1", tag="H")
        e(f"buffer_store_dwordx4 v[68:71], {v(hs)}, {s(sWS, 4)}, {s(sT1)} offen sc1", tag="H")
        self.stamp(2)

    def hid_fft(self):
        e = self.e
        B1c, B1s, TWC, TWS, A2r, A2i, Asr, Asi, ZA = 128, 132, 136, 140, 144, 148, 152, 156, 160
        M = "v_mfma_f32_16x16x32_bf16"
        Tr, Ti, Ur, Ui, Bf, Zr, Zi, Sr, Si = 80, 88, 96, 104, 112, 164, 172, 180, 188
        for r in range(2):
            e(f"{M} {v(Tr + 4 * r, 4)}, {v(72 + 4 * r, 4)}, {v(B1c, 4)}, 0")
            e(f"{M} {v(Ti + 4 * r, 4)}, {v(72 + 4 * r, 4)}, {v(B1s, 4)}, 0")
        for r in range(2):
            for k in (0, 2):
                o = 4 * r + k
                e(f"v_pk_mul_f32 {v(Ur + o, 2)}, {v(Tr + o, 2)}, {v(TWC + k, 2)}")
                e(f"v_pk_mul_f32 {v(Ui + o, 2)}, {v(Ti + o, 2)}, {v(TWC + k, 2)}")
            for k in (0, 2):
                o = 4 * r + k
                e(f"v_pk_fma_f32 {v(Ur + o, 2)}, {v(Ti + o, 2)}, {v(TWS + k, 2)}, {v(Ur + o, 2)}")
                e(f"v_pk_fma_f32 {v(Ui + o, 2)}, {v(Tr + o, 2)}, {v(TWS + k, 2)}, {v(Ui + o, 2)} neg_lo:[1,0,0] neg_hi:[1,0,0]")
            for k in range(2):
                e(f"v_cvt_pk_bf16_f32 {v(Bf + 4 * r + k)}, {v(Ur + 4 * r + 2 * k)}, {v(Ur + 4 * r + 2 * k + 1)}")
                e(f"v_cvt_pk_bf16_f32 {v(Bf + 4 * r + 2 + k)}, {v(Ui + 4 * r + 2 * k)}, {v(Ui + 4 * r + 2 * k + 1)}")
        for r in range(2):
            for dst, A in ((Zr, A2r), (Sr, Asr), (Zi, A2i), (Si, Asi)):
                e(f"{M} {v(dst + 4 * r, 4)}, {v(A, 4)}, {v(Bf + 4 * r, 4)}, 0")
        for dst, alt in ((Zr, Sr), (Zi, Si)):
            for k in range(8):
                e(f"v_cndmask_b32 {v(dst + k)}, {v(dst + k)}, {v(alt + k)}, {s(sM0, 2)}")
        for part, z in enumerate((Zr, Zi)):
            for j in range(4):
                e(f"v_cvt_pk_bf16_f32 {v(Tr + 4 * part + j)}, {v(z + j)}, {v(z + 4 + j)}")
                e(f"ds_write_b32 {v(ZA + j)}, {v(Tr + 4 * part + j)} offset:{16 * part}")
        e(f"s_lshl_b32 {s(sT0)}, {s(sW)}, 11")
        e(f"s_add_u32 {s(sT0)}, {s(sT0)}, {ZST}")
        e(f"v_lshl_add_u32 {v(vT)}, {v(vLANE)}, 4, {s(sT0)}")
        e(f"v_lshrrev_b32 {v(vT + 1)}, 2, {v(vLANE)}")
        e(f"v_and_b32 {v(vT + 2)}, 3, {v(vLANE)}")
        e(f"v_lshlrev_b32 {v(vT + 2)}, 4, {v(vT + 2)}")
        e(f"v_lshl_add_u32 {v(vT + 1)}, {v(vT + 1)}, 14, {v(vT + 2)}")
        e(f"s_lshl_b32 {s(sT0)}, {s(sW)}, 19")
        e(f"s_lshl_b32 {s(sT1)}, s2, 6")
        e(f"s_add_u32 {s(sT0)}, {s(sT0)}, {s(sT1)}")
        e(f"s_add_u32 {s(sT0)}, {s(sT0)}, {Z_}")
        e(f"s_add_u32 {s(sT1)}, {s(sT0)}, 262144")
        e.wait_all(vm=False)
        e("s_barrier")
        e(f"ds_read_b128 v[64:67], {v(vT)}")
        e(f"ds_read_b128 v[68:71], {v(vT)} offset:1024")
        e(f"buffer_store_dwordx4 v[64:67], {v(vT + 1)}, {s(sWS, 4)}, {s(sT0)} offen sc1", tag="Z")
        e(f"buffer_store_dwordx4 v[68:71], {v(vT + 1)}, {s(sWS, 4)}, {s(sT1)} offen sc1", tag="Z")

    def publish(self, tag, base):
        e = self.e
        e(f"s_lshl_b32 {s(sT0)}, {s(sW)}, 8")
        e(f"s_add_u32 {s(sT0)}, {s(sT0)}, s2")
        e(f"s_lshl_b32 {s(sT0)}, {s(sT0)}, 7")
        e(f"s_add_u32 {s(sT0)}, {s(sT0)}, {base}")
        e.wait_vm(tag)
        self.flag_store(sT0)

    def gemm_addresses(self):
        e = self.e
        l16 = vT
        e(f"v_lshlrev_b32 {v(l16)}, 4, {v(vLANE)}")
        e(f"s_lshl_b32 {s(sT0)}, {s(sD)}, 18")
        e(f"s_add_u32 {s(sT0)}, {s(sT0)}, {s(sLDS)}")
        e(f"s_add_u32 {s(sT0)}, {s(sT0)}, {H_}")
        e(f"v_add_u32 {v(vA1)}, {s(sT0)}, {v(l16)}")
        e(f"v_add_u32 {v(vA1 + 1)}, 131072, {v(vA1)}")
        e(f"s_mul_i32 {s(sT0)}, {s(sD)}, 229376")
        e(f"s_add_u32 {s(sT0)}, {s(sT0)}, {U_}")
        e(f"s_lshl_b32 {s(sT1)}, {s(sF)}, 2")
        e(f"s_add_u32 {s(sT1)}, {s(sT1)}, {s(sW)}")
        e(f"s_lshl_b32 {s(sT1)}, {s(sT1)}, 10")
        e(f"s_add_u32 {s(sT1)}, {s(sT1)}, {s(sT0)}")
        e(f"v_add_u32 {v(vUST)}, {s(sT1)}, {v(l16)}")
        e(f"s_mul_i32 {s(sT1)}, {s(sW)}, {28 * 1024}")
        e(f"s_add_u32 {s(sT0)}, {s(sT0)}, {s(sT1)}")
        e(f"s_and_b32 {s(sT1)}, {s(sW)}, 1")
        e(f"s_lshl_b32 {s(sT1)}, {s(sT1)}, 8")
        e(f"v_xor_b32 {v(vT + 1)}, {s(sT1)}, {v(l16)}")
        e(f"v_add_u32 {v(vA2)}, {s(sT0)}, {v(vT + 1)}")
        e(f"v_add_u32 {v(vA2 + 1)}, 114688, {v(vA2)}")
        for q in (1, 2, 3):
            e(f"s_xor_b32 {s(sT0)}, {s(sW)}, {q}")
            e(f"s_mul_i32 {s(sT0)}, {s(sT0)}, 6144")
            e(f"s_add_u32 {s(sT0)}, {s(sT0)}, {R_ + (q - 1) * 2048}")
            e(f"v_add_u32 {v(vRW + q - 1)}, {s(sT0)}, {v(l16)}")
        e(f"s_mul_i32 {s(sT0)}, {s(sW)}, 6144")
        e(f"s_add_u32 {s(sT0)}, {s(sT0)}, {R_}")
        e(f"v_add_u32 {v(vRR)}, {s(sT0)}, {v(l16)}")
        t, d0, tm, u = vT + 1, vT + 2, vT + 3, vT + 4
        e(f"s_lshr_b32 {s(sT0)}, {s(sW)}, 1")
        e(f"s_lshl_b32 {s(sT0)}, {s(sT0)}, 5")
        e(f"s_lshl_b32 {s(sT1)}, {s(sT)}, 6")
        e(f"s_add_u32 {s(sT0)}, {s(sT0)}, {s(sT1)}")
        e(f"v_and_b32 {v(t)}, 31, {v(vLANE)}")
        e(f"v_add_u32 {v(t)}, {s(sT0)}, {v(t)}")
        e(f"s_and_b32 {s(sT0)}, {s(sW)}, 1")
        e(f"s_lshl_b32 {s(sT0)}, {s(sT0)}, 4")
        e(f"s_lshl_b32 {s(sT1)}, {s(sD)}, 6")
        e(f"s_add_u32 {s(sT0)}, {s(sT0)}, {s(sT1)}")
        e(f"v_lshrrev_b32 {v(d0)}, 5, {v(vLANE)}")
        e(f"v_lshl_add_u32 {v(d0)}, {v(d0)}, 3, {s(sT0)}")
        e(f"v_lshlrev_b32 {v(u)}, 1, {v(d0)}")
        e(f"v_lshl_add_u32 {v(vXO)}, {v(t)}, 10, {v(u)}")
        e(f"v_lshlrev_b32 {v(u)}, 1, {v(t)}")
        e(f"buffer_load_ushort {v(vB2)}, {v(u)}, {s(sB2, 4)}, 0 offen")
        e(f"v_cmp_eq_u32 vcc, 0, {v(d0)}")
        e(f"v_mov_b32 {v(u)}, 0xffff0000")
        e(f"v_cndmask_b32 {v(vZM)}, -1, {v(u)}, vcc")
        e(f"s_cmp_ge_u32 {s(sD)}, 4")
        e(f"s_cselect_b32 {s(sMIR)}, 0xffff, -1")
        e(f"s_cselect_b64 {s(sM1, 2)}, -1, 0")
        e(f"s_cselect_b32 {s(sT0)}, 3, 0")
        for k in range(4):
            e(f"s_xor_b32 {s(sSK + k)}, {s(sT0)}, {k}")
            e(f"s_lshl_b32 {s(sSK + k)}, {s(sSK + k)}, 13")
        e(f"v_sub_u32 {v(tm)}, 2048, {v(t)}")
        e(f"v_and_b32 {v(tm)}, 2047, {v(tm)}")
        e(f"v_cndmask_b32 {v(tm)}, {v(t)}, {v(tm)}, {s(sM1, 2)}")
        e(f"v_lshrrev_b32 {v(u)}, 7, {v(tm)}")
        e(f"v_lshlrev_b32 {v(u)}, 9, {v(u)}")
        e(f"v_and_b32 {v(t)}, 31, {v(tm)}")
        e(f"v_lshl_add_u32 {v(u)}, {v(t)}, 4, {v(u)}")
        e(f"v_bfe_u32 {v(t)}, {v(tm)}, 5, 2")
        e(f"v_lshl_add_u32 {v(u)}, {v(t)}, 2, {v(u)}")
        e(f"v_add_u32 {v(u)}, {S_}, {v(u)}")
        for mt in range(2):
            e(f"v_lshrrev_b32 {v(t)}, 1, {v(d0)}")
            e(f"v_add_u32 {v(t)}, {16 * mt}, {v(t)}")
            e(f"v_sub_u32 {v(tm)}, 256, {v(t)}")
            e(f"v_and_b32 {v(vT + 5)}, 127, {v(tm)}")
            e(f"v_cndmask_b32 {v(vT + 5)}, {v(t)}, {v(vT + 5)}, {s(sM1, 2)}")
            e(f"v_lshl_add_u32 {v(vS0 + mt)}, {v(vT + 5)}, 13, {v(u)}")
            e(f"v_add_u32 {v(t)}, 1, {v(t)}")
            e(f"v_subrev_u32 {v(tm)}, 4, {v(tm)}")
            e(f"v_cndmask_b32 {v(vT + 5)}, {v(t)}, {v(tm)}, {s(sM1, 2)}")
            e(f"v_lshl_add_u32 {v(vS1 + mt)}, {v(vT + 5)}, 13, {v(u)}")

    def fu_poll_addr(self, mt):
        e = self.e
        e(f"s_add_u32 {s(sT0)}, {s(sD)}, {8 * mt}")
        e(f"s_mul_i32 {s(sT0)}, {s(sT0)}, 112")
        e(f"s_mul_i32 {s(sT1)}, {s(sW)}, 28")
        e(f"s_add_u32 {s(sT0)}, {s(sT0)}, {s(sT1)}")
        e(f"v_min_u32 {v(vPOLL)}, 27, {v(vLANE)}")
        e(f"v_add_u32 {v(vPOLL)}, {s(sT0)}, {v(vPOLL)}")
        e(f"v_lshlrev_b32 {v(vPOLL)}, 7, {v(vPOLL)}")
        e(f"v_add_u32 {v(vPOLL)}, {FU}, {v(vPOLL)}")

    def fu_flag_off(self, mt, dst):
        return [f"s_add_u32 {s(dst)}, {s(sD)}, {8 * mt}",
                f"s_mul_i32 {s(dst)}, {s(dst)}, 28",
                f"s_add_u32 {s(dst)}, {s(dst)}, {s(sF)}",
                f"s_lshl_b32 {s(dst)}, {s(dst)}, 2",
                f"s_add_u32 {s(dst)}, {s(dst)}, {s(sW)}",
                f"s_lshl_b32 {s(dst)}, {s(dst)}, 7",
                f"s_add_u32 {s(dst)}, {s(dst)}, {FU}"]

    def red_write(self, acc):
        return [(f"ds_write_b128 {v(vRW + q - 1)}, {v(acc + 8 * q + 4 * h, 4)} offset:{1024 * h}", "red")
                for q in (1, 2, 3) for h in range(2)]

    def red_read(self, acc):
        out = [(f"ds_read_b128 {v(acc + 8 * q + 4 * h, 4)}, {v(vRR)} offset:{2048 * (q - 1) + 1024 * h}", None)
               for q in (1, 2, 3) for h in range(2)]
        for k in range(0, 8, 2):
            out.append((f"v_pk_add_f32 {v(acc + k, 2)}, {v(acc + k, 2)}, {v(acc + 8 + k, 2)}", None))
        for k in range(0, 8, 2):
            out.append((f"v_pk_add_f32 {v(acc + 16 + k, 2)}, {v(acc + 16 + k, 2)}, {v(acc + 24 + k, 2)}", None))
        for k in range(0, 8, 2):
            out.append((f"v_pk_add_f32 {v(acc + k, 2)}, {v(acc + k, 2)}, {v(acc + 16 + k, 2)}", None))
        return out

    def gelu(self, acc):
        x, t = acc, acc + 8
        k2 = -2.0 * 0.7978845608028654 * 1.4426950408889634
        o = []
        R = range(8)
        o += [f"v_cvt_pk_bf16_f32 {v(x + i)}, 0, {v(x + i)}" for i in R]
        o += [f"v_add_f32 {v(x + i)}, {v(x + i)}, {v(vB1 + i)}" for i in R]
        o += [f"v_cvt_pk_bf16_f32 {v(x + i)}, 0, {v(x + i)}" for i in R]
        o += [f"v_mul_f32 {v(t + i)}, {v(x + i)}, {v(x + i)}" for i in R]
        o += [f"v_mov_b32 {v(t + 8)}, {f32(k2)}"]
        o += [f"v_fmamk_f32 {v(t + i)}, {v(t + i)}, {f32(k2 * 0.044715)}, {v(t + 8)}" for i in R]
        o += [f"v_mul_f32 {v(t + i)}, {v(t + i)}, {v(x + i)}" for i in R]
        o += [f"v_exp_f32 {v(t + i)}, {v(t + i)}" for i in R]
        o += [f"v_add_f32 {v(t + i)}, 1.0, {v(t + i)}" for i in R]
        o += [f"v_rcp_f32 {v(t + i)}, {v(t + i)}" for i in R]
        o += [f"v_mul_f32 {v(x + i)}, {v(x + i)}, {v(t + i)}" for i in R]
        o += [f"v_cvt_pk_bf16_f32 {v(acc + 20 + i)}, {v(x + 2 * i)}, {v(x + 2 * i + 1)}" for i in range(4)]
        return [(i, None) for i in o]

    def a_load(self, which, n, step):
        mt, st = divmod(step, n)
        va, tab = (vA1, sA1) if which == 1 else (vA2, sA2)
        slot = RING + 4 * (step % self.c["ring"])
        self.e(f"buffer_load_dwordx4 {v(slot, 4)}, {v(va + mt)}, {s(sWS, 4)}, {s(tab + st // 4)} offen"
               f" offset:{(st % 4) * 1024} sc1")

    def mfma_step(self, which, n, step):
        mt, st = divmod(step, n)
        slot = v(RING + 4 * (step % self.c["ring"]), 4)
        for pt in range(2):
            acc = v(ACC[mt] + 16 * pt, 16)
            w = a_(8 * st + 4 * pt, 4)
            A, B = (w, slot) if which == 1 else (slot, w)
            self.e(f"v_mfma_f32_32x32x16_bf16 {acc}, {A}, {B}, {acc if st else 0}")

    def run_fill(self, fill, k):
        for _ in range(k):
            if not fill:
                return
            item = fill.pop(0)
            if callable(item):
                item()
            else:
                self.e(item[0], tag=item[1])

    def gemm1_role(self):
        e, c = self.e, self.c
        ring = c["ring"]
        nxt = c["w1_first"]
        done = 0

        def pump(limit):
            nonlocal nxt, done
            while nxt < limit:
                if nxt - done >= 16:
                    self.tr(1, done, done % 16)
                    done += 1
                e.wait_lg(("tr", nxt % 16))
                self.dma(1, nxt, nxt % 16)
                nxt += 1

        pump(nxt + c["w1_second"])
        self.hid_fft()
        self.publish("H", FH)
        self.stamp(3)
        e(f"s_lshl_b32 {s(sT0)}, {s(sF)}, 7")
        e(f"s_lshl_b32 {s(sT1)}, {s(sW)}, 5")
        e(f"s_add_u32 {s(sT0)}, {s(sT0)}, {s(sT1)}")
        e(f"v_lshrrev_b32 {v(vT + 8)}, 5, {v(vLANE)}")
        e(f"v_lshlrev_b32 {v(vT + 8)}, 3, {v(vT + 8)}")
        e(f"buffer_load_dwordx2 {v(vT + 10, 2)}, {v(vT + 8)}, {s(sB1, 4)}, {s(sT0)} offen")
        e(f"buffer_load_dwordx2 {v(vT + 12, 2)}, {v(vT + 8)}, {s(sB1, 4)}, {s(sT0)} offen offset:16")
        while done < c["w1_first"]:
            self.tr(1, done, done)
            done += 1
        pump(min(32, nxt + 6))
        self.gemm_addresses()
        self.publish("Z", FZ)
        e("s_barrier")
        self.stamp(4)
        self.unpack(vT + 10, vB1)
        while nxt < 32:
            self.tr(1, done, done % 16)
            done += 1
            pump(nxt + 1)
        w2n = 0
        while done < 32:
            self.tr(1, done, done % 16)
            done += 1
            if w2n < c["w2_pre"] and done >= 16 + w2n + 2:
                e.wait_lg(("tr", w2n))
                self.dma(2, w2n, w2n)
                w2n += 1
        while w2n < c["w2_pre"]:
            e.wait_lg(("tr", w2n))
            self.dma(2, w2n, w2n)
            w2n += 1
        self.stamp(5)
        e(f"s_lshr_b32 {s(sT0)}, {s(sD)}, 1")
        e(f"s_lshl_b32 {s(sT0)}, {s(sT0)}, 2")
        e(f"s_add_u32 {s(sT0)}, {s(sT0)}, {s(sW)}")
        e(f"s_lshl_b32 {s(sT0)}, {s(sT0)}, 13")
        e(f"s_add_u32 {s(sT0)}, {s(sT0)}, {FH}")
        e(f"v_lshlrev_b32 {v(vPOLL)}, 7, {v(vLANE)}")
        self.poll_blocking([(vPA, vPOLL, s(sT0))])
        self.stamp(6)
        for st in range(ring):
            self.a_load(1, 32, st)
        fill = []
        w2tr = 0
        for step in range(64):
            self.mfma_step(1, 32, step)
            if step + ring < 64:
                self.a_load(1, 32, step + ring)
            if step == 31:
                self.stamp(7)
            if step == 52:
                e("s_barrier")
            if step == 34:
                fill += self.red_write(ACC[0])
                fill += [lambda: e.wait_lg("red"), ("s_barrier", None)]
                fill += self.red_read(ACC[0]) + self.gelu(ACC[0])
                fill += [(t, None) for t in self.fu_flag_off(0, sT2)]
                fill += [(f"buffer_store_dwordx4 {v(ACC[0] + 20, 4)}, {v(vUST)}, {s(sWS, 4)}, 0 offen sc1", "Ua")]
                self.ua_step = None
            if step >= 34 and fill:
                self.run_fill(fill, 13)
                if not fill:
                    self.ua_step = step
            if step > 34 and self.ua_step is not None and step == min(63, self.ua_step + c["ack_a"]):
                e.wait_vm("Ua")
                self.flag_store(sT2)
                self.stamp(8)
            if step < 32:
                if w2n < 16 and step >= 32 - 2 * (16 - c["w2_pre"]) and step % 2 == 0:
                    e.wait_lg(("tr", w2n))
                    self.dma(2, w2n, w2n)
                    w2n += 1
            elif step >= 33:
                if w2tr < 16 and w2tr < w2n:
                    self.tr(2, w2tr, w2tr)
                    w2tr += 1
                if w2n < 28 and w2tr >= w2n - 16 + 3 and step >= 40 and step % 2 == 0:
                    e.wait_lg(("tr", w2n % 16))
                    self.dma(2, w2n, w2n % 16)
                    w2n += 1
        assert not fill
        self.stamp(9)
        while w2n < 28:
            e.wait_lg(("tr", w2n % 16))
            self.dma(2, w2n, w2n % 16)
            w2n += 1
        self.fu_poll_addr(0)
        self.run_fill(self.red_write(ACC[1]), 99)
        e(f"buffer_load_dword {v(vPA)}, {v(vPOLL)}, {s(sWS, 4)}, 0 offen sc1")
        e.wait_lg("red")
        e("s_barrier")
        self.run_fill(self.red_read(ACC[1]) + self.gelu(ACC[1]), 999)
        e(f"s_mov_b32 {s(sT3)}, 114688")
        e(f"buffer_store_dwordx4 {v(ACC[1] + 20, 4)}, {v(vUST)}, {s(sWS, 4)}, {s(sT3)} offen sc1", tag="Ub")
        for t in self.fu_flag_off(1, sT2):
            e(t)
        while w2tr < 28:
            self.tr(2, w2tr, w2tr % 16)
            w2tr += 1
        self.stamp(10)
        fast = self.lab("fast")
        self.poll_test([vPA])
        e(f"s_cbranch_vccz {fast}")
        st = e.state()
        e.wait_vm("Ub")
        self.flag_store(sT2)
        self.poll_blocking([(vPA, vPOLL, "0")])
        e.restore(st)
        e.label(fast)

    def fft_role(self):
        e, c = self.e, self.c
        sEP = sF
        e.vm = [(("w", 2, t[2]) if isinstance(t, tuple) and t[:2] == ("w", 1) else t, r) for t, r in e.vm]
        self.hid_fft()
        self.publish("H", FH)
        self.stamp(3)
        self.gemm_addresses()
        self.publish("Z", FZ)
        self.stamp(4)
        e(f"s_and_b32 {s(sT0)}, s2, 7")
        e(f"s_lshl_b32 {s(sT0)}, {s(sT0)}, 2")
        e(f"s_and_b32 {s(sT1)}, {s(sD)}, 3")
        e(f"s_add_u32 {s(sT0)}, {s(sT0)}, {s(sT1)}")
        e(f"s_lshl_b32 {s(sEP)}, {s(sT0)}, 2")
        e(f"s_add_u32 {s(sEP)}, {s(sEP)}, {s(sW)}")
        ZIN, B1, A2 = 128, 192, 224
        TW = 160
        th, c0, s0, pk = 64, 72, 80, 88
        lo, hi, fr, base = vT, vT + 1, vT + 2, vT + 3
        e(f"v_and_b32 {v(lo)}, 31, {v(vLANE)}")
        e(f"v_lshrrev_b32 {v(hi)}, 5, {v(vLANE)}")
        e(f"v_cvt_f32_ubyte0 {v(lo)}, {v(lo)}")
        e(f"v_cvt_f32_ubyte0 {v(hi)}, {v(hi)}")
        w2n, w2tr = c["w1_first"], 0

        def w2pump():
            nonlocal w2n, w2tr
            if w2tr < 16:
                self.tr(2, w2tr, w2tr)
                w2tr += 1
            if w2n < 28 and (w2n < 16 or w2tr >= w2n - 16 + 2):
                e.wait_lg(("tr", w2n % 16))
                self.dma(2, w2n, w2n % 16)
                w2n += 1

        e(f"v_mul_f32 {v(fr)}, {f32(1 / 32)}, {v(lo)}")
        e(f"v_mul_f32 {v(base)}, {f32(-0.25)}, {v(hi)}")
        for bq in range(4):
            for i in range(8):
                e(f"v_fmamk_f32 {v(th + i)}, {v(fr)}, {f32(8 * bq + i)}, {v(base)}")
            for i in range(8):
                e(f"v_cos_f32 {v(c0 + i)}, {v(th + i)}")
                e(f"v_sin_f32 {v(s0 + i)}, {v(th + i)}")
            for i in range(4):
                e(f"v_cvt_pk_bf16_f32 {v(pk + i)}, {v(c0 + 2 * i)}, {v(c0 + 2 * i + 1)}")
                e(f"v_cvt_pk_bf16_f32 {v(pk + 4 + i)}, -{v(s0 + 2 * i)}, -{v(s0 + 2 * i + 1)}")
            for i in range(8):
                e(f"v_accvgpr_write_b32 {a_(B1 + 8 * bq + i)}, {v(pk + i)}")
            w2pump()
            w2pump()
        e(f"v_mul_f32 {v(fr)}, {f32(1 / 64)}, {v(lo)}")
        e(f"v_mul_f32 {v(base)}, 4.0, {v(hi)}")
        e(f"v_mul_f32 {v(base)}, {v(base)}, {v(fr)}")
        for tm in range(4):
            order = [(0, 0), (0, 2), (1, 0), (1, 2), (0, 1), (0, 3), (1, 1), (1, 3)]
            for i, (i0, j) in enumerate(order):
                e(f"v_fmamk_f32 {v(th + i)}, {v(fr)}, {f32(16 * tm + 8 * i0 + j)}, {v(base)}")
            for i in range(8):
                e(f"v_cos_f32 {v(c0 + i)}, {v(th + i)}")
                e(f"v_sin_f32 {v(s0 + i)}, {v(th + i)}")
            for par in range(2):
                for k in range(2):
                    o = 4 * par + 2 * k
                    e(f"v_cvt_pk_bf16_f32 {v(pk + 4 * par + k)}, {v(c0 + o)}, {v(c0 + o + 1)}")
                    e(f"v_cvt_pk_bf16_f32 {v(pk + 4 * par + 2 + k)}, {v(s0 + o)}, {v(s0 + o + 1)}")
            for i in range(8):
                e(f"v_accvgpr_write_b32 {a_(A2 + 8 * tm + i)}, {v(pk + i)}")
            w2pump()
            w2pump()
        e(f"v_mul_f32 {v(fr)}, {f32(1 / 2048)}, {v(lo)}")
        e(f"v_mul_f32 {v(base)}, 4.0, {v(hi)}")
        e(f"v_mul_f32 {v(base)}, {v(base)}, {v(fr)}")
        for tm in range(4):
            for i in range(8):
                e(f"v_fmamk_f32 {v(th + i)}, {v(fr)}, {f32(16 * tm + 8 * (i // 4) + i % 4)}, {v(base)}")
            for i in range(8):
                e(f"v_cos_f32 {v(TW + 16 * tm + i)}, {v(th + i)}")
                e(f"v_sin_f32 {v(TW + 16 * tm + 8 + i)}, {v(th + i)}")
            w2pump()
            w2pump()
        while w2n < 28:
            w2pump()
        self.stamp(5)
        e(f"s_lshr_b32 {s(sT0)}, {s(sEP)}, 5")
        e(f"s_lshl_b32 {s(sT0)}, {s(sT0)}, 15")
        e(f"s_add_u32 {s(sT0)}, {s(sT0)}, {FZ}")
        e(f"s_add_u32 {s(sT1)}, {s(sT0)}, 8192")
        e(f"s_add_u32 {s(sT2)}, {s(sT0)}, 16384")
        e(f"s_add_u32 {s(sT3)}, {s(sT0)}, 24576")
        e(f"v_lshlrev_b32 {v(vPOLL)}, 7, {v(vLANE)}")
        za = vT + 4
        e(f"v_and_b32 {v(za)}, 15, {v(vLANE)}")
        e(f"v_lshlrev_b32 {v(za)}, 6, {v(za)}")
        e(f"v_bfe_u32 {v(za + 1)}, {v(vLANE)}, 4, 1")
        e(f"v_lshl_add_u32 {v(za)}, {v(za + 1)}, 5, {v(za)}")
        e(f"v_lshrrev_b32 {v(za + 1)}, 5, {v(vLANE)}")
        e(f"v_lshl_add_u32 {v(za)}, {v(za + 1)}, 4, {v(za)}")
        self.poll_blocking([(vT + 8 + k, vPOLL, s(sT0 + k)) for k in range(4)])
        self.stamp(6)
        e(f"s_lshl_b32 {s(sT0)}, {s(sEP)}, 14")
        e(f"s_add_u32 {s(sT0)}, {s(sT0)}, {Z_}")
        for k in range(1, 4):
            e(f"s_add_u32 {s(sT0 + k)}, {s(sT0)}, {4096 * k}")
        for tm in range(4):
            for bq in range(4):
                e(f"buffer_load_dwordx4 {a_(ZIN + 16 * tm + 4 * bq, 4)}, {v(za)}, {s(sWS, 4)}, {s(sT0 + bq)} offen"
                  f" offset:{1024 * tm} sc1")
        skip = self.lab("non")
        e(f"s_cmp_lg_u32 {s(sEP)}, 0")
        e(f"s_cbranch_scc1 {skip}")
        st = e.state()
        e(f"s_mov_b32 {s(sCNT)}, 0")
        self.flag_store(sCNT)
        e.wait_all(lg=False)
        e.restore(st)
        e.label(skip)
        M = "v_mfma_f32_32x32x16_bf16"
        AC1 = (64, 224)
        AC2 = 96
        Ur, Bf = vT, vT + 16

        def stage1(tm):
            r = AC1[tm % 2]
            return [(f"{M} {v(r + 16 * part, 16)}, {a_(ZIN + 16 * tm + 4 * bq, 4)}, {a_(B1 + 8 * bq + 4 * part, 4)}, "
                     f"{v(r + 16 * part, 16) if bq else 0}", None) for bq in range(4) for part in range(2)]

        def twiddle(tm, e2):
            r = AC1[tm % 2] + 8 * e2
            im = r + 16
            cs, sn = TW + 16 * tm, TW + 16 * tm + 8
            o = []
            o += [f"v_mul_f32 {v(Ur + k)}, {v(r + k)}, {v(cs + k)}" for k in range(8)]
            o += [f"v_mul_f32 {v(Ur + 8 + k)}, {v(im + k)}, {v(cs + k)}" for k in range(8)]
            o += [f"v_fmac_f32 {v(Ur + k)}, {v(im + k)}, {v(sn + k)}" for k in range(8)]
            o += [f"v_fma_f32 {v(Ur + 8 + k)}, -{v(r + k)}, {v(sn + k)}, {v(Ur + 8 + k)}" for k in range(8)]
            for par in range(2):
                for part in range(2):
                    for i0 in range(2):
                        x = Ur + 8 * part + 4 * i0 + par
                        o.append(f"v_cvt_pk_bf16_f32 {v(Bf + 4 * par + 2 * part + i0)}, {v(x)}, {v(x + 2)}")
            for par in range(2):
                acc = v(AC2 + 32 * e2 + 16 * par, 16)
                o.append(f"{M} {acc}, {a_(A2 + 8 * tm + 4 * par, 4)}, {v(Bf + 4 * par, 4)}, {acc if tm else 0}")
            return [(i, None) for i in o]

        self.run_fill(stage1(0), 99)
        for tm in range(4):
            m = stage1(tm + 1) if tm < 3 else []
            work = twiddle(tm, 0) + twiddle(tm, 1)
            while work:
                self.run_fill(m, 1)
                self.run_fill(work, 8)
        self.stamp(7)
        e(f"s_lshl_b32 {s(sT0)}, {s(sEP)}, 13")
        e(f"s_add_u32 {s(sT0)}, {s(sT0)}, {S_}")
        e(f"s_add_u32 {s(sT1)}, {s(sT0)}, 4096")
        e(f"v_lshlrev_b32 {v(za)}, 4, {v(vLANE)}")
        out = 64
        for i in range(4):
            for t2 in range(2):
                op = "v_sub_f32" if t2 else "v_add_f32"
                for j in range(4):
                    k = 4 * i + j
                    e(f"{op} {v(Ur + 8 + j)}, {v(AC2 + k)}, {v(AC2 + 16 + k)}")
                    e(f"{op} {v(Ur + 12 + j)}, {v(AC2 + 32 + k)}, {v(AC2 + 48 + k)}")
                o = out + 4 * (2 * i + t2)
                for j in range(4):
                    e(f"v_cvt_pk_bf16_f32 {v(o + j)}, {v(Ur + 8 + j)}, {v(Ur + 12 + j)}")
                e(f"buffer_store_dwordx4 {v(o, 4)}, {v(za)}, {s(sWS, 4)}, {s(sT0 + t2)} offen offset:{1024 * i} sc1", tag="S")
        while w2tr < 28:
            self.tr(2, w2tr, w2tr % 16)
            w2tr += 1
        e(f"s_lshl_b32 {s(sT2)}, {s(sEP)}, 7")
        e(f"s_add_u32 {s(sT2)}, {s(sT2)}, {FS}")
        self.fu_poll_addr(0)
        e.wait_vm("S")
        self.flag_store(sT2)
        self.stamp(9)
        self.poll_blocking([(vPA, vPOLL, "0")])
        self.stamp(10)

    def epilogue(self, mt):
        e = self.e
        acc = ACC[mt]
        X, W = vE + 12 * mt, vE + 12 * mt + 4
        y, t = acc, acc + 8
        self.run_fill(self.red_write(acc), 99)
        e.wait_lg("red")
        e("s_barrier")
        self.run_fill(self.red_read(acc), 99)
        for j in range(4):
            e(f"v_permlane32_swap_b32 {v(y + j)}, {v(y + 4 + j)}")
        R = range(8)
        for i in R:
            e(f"v_cvt_pk_bf16_f32 {v(y + i)}, 0, {v(y + i)}")
        for i in R:
            e(f"v_add_f32 {v(y + i)}, {v(y + i)}, {v(vB2)}")
        for i in R:
            e(f"v_cvt_pk_bf16_f32 {v(y + i)}, 0, {v(y + i)}")
        for i in R:
            e(f"v_mul_f32 {v(t + i)}, {f32(-1.4426950408889634)}, {v(y + i)}")
        for i in R:
            e(f"v_exp_f32 {v(t + i)}, {v(t + i)}")
        for i in R:
            e(f"v_add_f32 {v(t + i)}, 1.0, {v(t + i)}")
        for i in R:
            e(f"v_rcp_f32 {v(t + i)}, {v(t + i)}")
        for i in R:
            e(f"v_mul_f32 {v(y + i)}, {v(y + i)}, {v(t + i)}")
        for i in R:
            e(f"v_cvt_pk_bf16_f32 {v(y + i)}, 0, {v(y + i)}")
        for k in range(4):
            e(f"v_bfi_b32 {v(W + k)}, {s(sMIR)}, {v(W + k)}, {v(W + k + 1)}")
        if mt == 0:
            e(f"v_and_b32 {v(W)}, {v(W)}, {v(vZM)}")
        self.unpack(W, t)
        self.unpack(X, t + 8)
        for i in R:
            e(f"v_mul_f32 {v(y + i)}, {v(y + i)}, {v(t + i)}")
        for i in R:
            e(f"v_cvt_pk_bf16_f32 {v(y + i)}, 0, {v(y + i)}")
        for i in R:
            e(f"v_add_f32 {v(y + i)}, {v(y + i)}, {v(t + 8 + i)}")
        for k in range(4):
            e(f"v_cvt_pk_bf16_f32 {v(X + k)}, {v(y + 2 * k)}, {v(y + 2 * k + 1)}")
        e(f"buffer_store_dwordx4 {v(X, 4)}, {v(vXO)}, {s(sOUT, 4)}, 0 offen offset:{64 * mt}")

    def gemm2(self):
        e, c = self.e, self.c
        ring = c["ring"]
        for st in range(ring):
            self.a_load(2, 28, st)
        for mt in range(2):
            e(f"buffer_load_dwordx4 {v(vE + 12 * mt, 4)}, {v(vXO)}, {s(sX, 4)}, 0 offen offset:{64 * mt}")
        e(f"v_lshlrev_b32 {v(vB2)}, 16, {v(vB2)}")
        self.fu_poll_addr(1)
        fsa = vT
        e(f"s_lshl_b32 {s(sT0)}, {s(sD)}, 5")
        e(f"v_min_u32 {v(vT + 1)}, 31, {v(vLANE)}")
        e(f"v_add_u32 {v(vT + 1)}, {s(sT0)}, {v(vT + 1)}")
        e(f"s_sub_u32 {s(sT0)}, 256, {s(sT0)}")
        e(f"v_min_u32 {v(vT + 2)}, 32, {v(vLANE)}")
        e(f"v_sub_u32 {v(vT + 2)}, {s(sT0)}, {v(vT + 2)}")
        e(f"v_and_b32 {v(vT + 2)}, 127, {v(vT + 2)}")
        e(f"v_cndmask_b32 {v(vT + 1)}, {v(vT + 1)}, {v(vT + 2)}, {s(sM1, 2)}")
        e(f"v_lshlrev_b32 {v(vT + 1)}, 7, {v(vT + 1)}")
        e(f"v_add_u32 {v(fsa)}, {FS}, {v(vT + 1)}")
        e.wait_vm("Ub")
        self.flag_store(sT2)
        self.stamp(11)
        for step in range(28):
            self.mfma_step(2, 28, step)
            if step + ring < 28:
                self.a_load(2, 28, step + ring)
            if step == 8:
                e("s_barrier")
            if step + ring == 28:
                e(f"buffer_load_dword {v(vPA)}, {v(vPOLL)}, {s(sWS, 4)}, 0 offen sc1")
                e(f"buffer_load_dword {v(vPB)}, {v(fsa)}, {s(sWS, 4)}, 0 offen sc1")
        self.stamp(12)
        fast = self.lab("fast")
        self.poll_test([vPA, vPB])
        e(f"s_cbranch_vccz {fast}")
        st = e.state()
        self.poll_blocking([(vPA, vPOLL, "0"), (vPB, fsa, "0")])
        e.restore(st)
        e.label(fast)
        self.stamp(13)
        for mt in range(2):
            W = vE + 12 * mt + 4
            e(f"buffer_load_dword {v(W)}, {v(vS0 + mt)}, {s(sWS, 4)}, 0 offen sc1")
            for k in range(4):
                e(f"buffer_load_dword {v(W + 1 + k)}, {v(vS1 + mt)}, {s(sWS, 4)}, {s(sSK + k)} offen sc1")
            if mt == 0:
                for stp in range(28, 28 + ring):
                    self.a_load(2, 28, stp)
        self.epilogue(0)
        self.stamp(14)
        for step in range(28, 56):
            self.mfma_step(2, 28, step)
            if step + ring < 56:
                self.a_load(2, 28, step + ring)
            if step == 36:
                e("s_barrier")
        self.stamp(15)
        self.epilogue(1)
        self.stamp(16)

    def build(self):
        e, c = self.e, self.c
        self.prologue()
        self.hid_consts()
        self.phase1()
        e(f"s_cmp_eq_u32 {s(sJQ)}, 7")
        e("s_cbranch_scc1 L_fft")
        st = e.state()
        self.gemm1_role()
        end1 = e.state()
        e("s_branch L_gemm2")
        e.restore(st)
        e.label("L_fft")
        self.fft_role()
        e.wait_all()
        e.restore(end1)
        e.label("L_gemm2")
        self.gemm2()
        if c["diag"]:
            e.wait_all()
            self.stamp(17)
            e(f"s_lshl_b32 {s(sT0)}, s2, 2")
            e(f"s_add_u32 {s(sT0)}, {s(sT0)}, {s(sW)}")
            e(f"s_lshl_b32 {s(sT0)}, {s(sT0)}, 8")
            e(f"s_add_u32 {s(sT0)}, {s(sT0)}, {DG}")
            e(f"v_lshlrev_b32 {v(vT)}, 2, {v(vLANE)}")
            e(f"buffer_store_dword {v(vSTAMP)}, {v(vT)}, {s(sWS, 4)}, {s(sT0)} offen")
        e.label("L_end")
        e("s_endpgm")
        e.label("L_code_end")
        head = open(f"cdna_kernels/{NAME}.s.ref").read().split("; Override")[0]
        return (head + "; @launch grid=(256,1,1) block=(256,1,1) lds=163840\n"
                '.amdgcn_target "amdgcn-amd-amdhsa--gfx950"\n.text\n'
                f".globl {NAME}_kernel\n.p2align 8\n.type {NAME}_kernel,@function\n{NAME}_kernel:\n"
                + e.text() +
                '.section .rodata,"a"\n.p2align 6\n'
                f".amdhsa_kernel {NAME}_kernel\n"
                "  .amdhsa_next_free_vgpr 512\n  .amdhsa_next_free_sgpr 102\n  .amdhsa_accum_offset 256\n"
                "  .amdhsa_group_segment_fixed_size 0\n  .amdhsa_kernarg_size 104\n  .amdhsa_user_sgpr_count 2\n"
                "  .amdhsa_user_sgpr_kernarg_segment_ptr 1\n  .amdhsa_system_sgpr_workgroup_id_x 1\n"
                ".end_amdhsa_kernel\n")


if __name__ == "__main__":
    out = sys.argv[1]
    kw = {k: int(x) for k, x in (a.split("=") for a in sys.argv[2:])}
    g = Gen(**kw)
    open(out, "w").write(g.build())
    print(out, "instructions:", g.e.n)
```

```python
import re

REG = re.compile(r"^(-?)(?:abs\()?([vas])(?:(\d+)|\[(\d+):(\d+)\])\)?$")
TRANS = ("v_exp_f32", "v_log_f32", "v_rcp_f32", "v_rsq_f32", "v_sqrt_f32", "v_sin_f32", "v_cos_f32")


def regs_of(tok):
    tok = tok.strip()
    if tok == "vcc":
        return [("s", 106), ("s", 107)]
    if tok == "vcc_lo":
        return [("s", 106)]
    if tok == "vcc_hi":
        return [("s", 107)]
    if tok == "m0":
        return [("s", 124)]
    if tok == "exec":
        return [("s", 126), ("s", 127)]
    m = REG.match(tok)
    if not m:
        return []
    k = m.group(2)
    if m.group(3) is not None:
        return [(k, int(m.group(3)))]
    return [(k, i) for i in range(int(m.group(4)), int(m.group(5)) + 1)]


def split_ops(rest):
    out, depth, cur = [], 0, ""
    for ch in rest:
        if ch in "[(":
            depth += 1
        if ch in "])":
            depth -= 1
        if ch == "," and depth == 0:
            out.append(cur.strip())
            cur = ""
        else:
            cur += ch
    if cur.strip():
        out.append(cur.strip())
    if out:
        parts = out[-1].split()
        out[-1] = parts[0]
        mods = parts[1:]
    else:
        mods = []
    return out, mods


class Ins:
    def __init__(self, text):
        self.text = text
        p = text.split(None, 1)
        self.op = p[0]
        self.ops, self.mods = split_ops(p[1]) if len(p) > 1 else ([], [])
        op, ops = self.op, self.ops
        R = lambda i: regs_of(ops[i]) if i < len(ops) else []
        allr = lambda a: [r for i in range(a, len(ops)) for r in R(i)]
        self.kind = "other"
        self.w, self.r = [], []
        self.srcC = []
        self.dpp = any(m.startswith(("quad_perm", "row_", "wave_")) for m in self.mods)
        if op.startswith("v_mfma"):
            self.kind = "mfma"
            self.passes = 8 if "32x32" in op else 4
            self.w = R(0)
            self.srcAB = R(1) + R(2)
            self.srcC = R(3)
            self.r = self.srcAB + self.srcC
        elif op.startswith("v_"):
            self.kind = "valu"
            self.w, self.r = R(0), allr(1)
            if op.startswith("v_permlane"):
                self.w = R(0) + R(1)
                self.r = R(0) + R(1)
            if op.startswith(("v_fmac", "v_pk_fmac")) or self.dpp:
                self.r = self.r + R(0)
            if op.startswith("v_cndmask") and len(ops) == 3:
                self.r += regs_of("vcc")
        elif op.startswith("ds_"):
            self.kind = "ds"
            if "read" in op:
                self.w, self.r = R(0), allr(1)
            else:
                self.r = allr(0)
        elif op.startswith("buffer_"):
            self.kind = "vmem"
            self.lds = "lds" in self.mods
            if self.lds:
                self.r = allr(0) + regs_of("m0")
            elif "load" in op:
                self.w, self.r = R(0), allr(1)
                if "d16" in op:
                    self.r += R(0)
            else:
                self.r = allr(0)
                self.data = R(0)
        elif op.startswith(("s_load", "s_memrealtime", "s_memtime")):
            self.kind = "smem"
            self.w, self.r = R(0), allr(1)
        elif op.startswith("s_"):
            self.kind = "salu"
            if op.startswith(("s_cmp", "s_bitcmp", "s_waitcnt", "s_barrier", "s_branch", "s_cbranch", "s_nop",
                              "s_sleep", "s_endpgm", "s_setprio")):
                self.r = allr(0)
            else:
                self.w, self.r = R(0), allr(1)
        self.trans = op.startswith(TRANS)
        self.states = 1
        if op == "s_nop":
            self.states = int(ops[0]) + 1


class Asm:
    def __init__(self):
        self.lines = []
        self.hist = []
        self.vm = []
        self.lg = []
        self.smem = []
        self.n = 0
        self.bg = []
        self.since = 0
        self.hold = 0

    def _tick(self):
        if self.hold or not self.bg:
            return
        self.since += 1
        while self.bg and self.since >= self.bg[0][0]:
            if self.bg[0][0]:
                self.since = 0
            self.run_bg(1)

    def run_bg(self, n=10 ** 6):
        self.hold += 1
        while n and self.bg:
            self.bg.pop(0)[1]()
            n -= 1
        self.hold -= 1

    def atomic(self):
        asm = self

        class Hold:
            def __enter__(self_):
                asm.hold += 1

            def __exit__(self_, *a):
                asm.hold -= 1
        return Hold()

    def state(self):
        return (list(self.hist), list(self.vm), list(self.lg), list(self.smem))

    def restore(self, st):
        self.hist, self.vm, self.lg, self.smem = (list(x) for x in st)

    def raw(self, text):
        self.lines.append(text)

    def label(self, name):
        self.lines.append(name + ":")

    def comment(self, text):
        self.lines.append("    ; " + text)

    def _put(self, ins):
        self.lines.append("    " + ins.text)
        self.hist.append(ins)
        self.hist = self.hist[-24:]
        self.n += 1

    def _wait(self, vm=None, lg=None):
        parts = []
        if vm is not None:
            parts.append(f"vmcnt({min(vm, 63)})")
            self.vm = self.vm[len(self.vm) - min(vm, 63):] if min(vm, 63) else []
        if lg is not None:
            if self.smem:
                lg = 0
                self.smem = []
            parts.append(f"lgkmcnt({min(lg, 15)})")
            self.lg = self.lg[len(self.lg) - min(lg, 15):] if min(lg, 15) else []
        if parts:
            self._put(Ins("s_waitcnt " + " ".join(parts)))

    @staticmethod
    def _need(queue, pred):
        idx = [i for i, e in enumerate(queue) if pred(e)]
        return None if not idx else len(queue) - 1 - idx[-1]

    def wait_vm(self, tag):
        self._wait(vm=self._need(self.vm, lambda e: e[0] == tag))

    def wait_lg(self, tag):
        self._wait(lg=self._need(self.lg, lambda e: e[0] == tag))

    def wait_all(self, vm=True, lg=True):
        self._wait(vm=0 if vm and self.vm else None, lg=0 if lg and (self.lg or self.smem) else None)

    def drained_vm(self):
        self.vm = []

    def _dist_need(self, ins):
        need = 0
        d = 0
        rs, ws = set(ins.r), set(ins.w)
        for p in reversed(self.hist):
            pw = set(p.w)
            req = 0
            if p.kind == "valu":
                vw = {x for x in pw if x[0] != "s"}
                sw = {x for x in pw if x[0] == "s"}
                if ins.kind == "mfma" and vw & rs:
                    req = 2
                if ins.kind == "valu":
                    if vw & rs and (ins.dpp or ins.op.startswith("v_permlane")):
                        req = max(req, 2)
                    if vw & rs and ins.op.startswith(("v_readlane", "v_readfirstlane")):
                        req = max(req, 1)
                    if p.trans and not ins.trans and vw & rs:
                        req = max(req, 1)
                    if sw & rs:
                        req = max(req, 4 if ins.op.startswith(("v_readlane", "v_writelane")) else 2)
                if ins.kind == "vmem" and sw & rs:
                    req = max(req, 5)
                if ins.kind in ("salu", "smem") and sw & rs:
                    req = max(req, 1)
            elif p.kind == "mfma":
                big = p.passes == 8
                if ins.kind == "mfma":
                    if pw & set(ins.srcAB):
                        req = 12 if big else 8
                    elif pw & set(ins.srcC) and not (p.w == ins.srcC and p.passes == ins.passes):
                        req = 10 if big else 6
                    elif pw & ws and not (p.w == ins.srcC):
                        req = 10 if big else 6
                elif ins.kind in ("valu", "ds", "vmem") and pw & (rs | ws):
                    req = 12 if big else 8
                if ins.kind == "valu" and set(p.srcC) & ws:
                    req = max(req, 7 if big else 3)
            elif p.kind == "salu":
                if ("s", 124) in pw and ins.kind == "vmem" and getattr(ins, "lds", False):
                    req = 1
            elif p.kind == "vmem":
                if hasattr(p, "data") and len(p.data) >= 3 and set(p.data) & ws:
                    req = 2
            need = max(need, req - d)
            d += p.states
            if d >= 20:
                break
        return need

    def __call__(self, text, tag=None):
        for t in text.strip().split("\n"):
            t = t.split(";")[0].strip()
            if t:
                self._one(t, tag)
                if not t.startswith(("s_cmp", "s_cselect", "s_cbranch", "s_branch")):
                    self._tick()

    def _one(self, text, tag):
        ins = Ins(text)
        touched = set(ins.r) | set(ins.w)
        nv = self._need(self.vm, lambda e: touched & e[1])
        nl = self._need(self.lg, lambda e: touched & e[1])
        if touched & set(self.smem):
            nl = 0
        if nv is not None or nl is not None:
            self._wait(vm=nv, lg=nl)
        need = self._dist_need(ins)
        if need > 0:
            self._put(Ins(f"s_nop {need - 1}"))
        self._put(ins)
        if ins.kind == "vmem":
            self.vm.append((tag, set(ins.w)))
        elif ins.kind == "ds":
            self.lg.append((tag, set(ins.w)))
        elif ins.kind == "smem":
            self.smem += ins.w

    def text(self):
        return "\n".join(self.lines) + "\n"


def v(a, n=1):
    return f"v{a}" if n == 1 else f"v[{a}:{a + n - 1}]"


def a_(a, n=1):
    return f"a{a}" if n == 1 else f"a[{a}:{a + n - 1}]"


def s(a, n=1):
    return f"s{a}" if n == 1 else f"s[{a}:{a + n - 1}]"
```

```python
import struct, sys
from asmgen import Asm, v, a_, s

NAME = "recurrent_scan__spectral_fnet__mixer_token_mlp__prompt"

DEFAULTS = dict(
    diag=0,
    ring=16,
    rotc=0,
    rotw=1,
    gap_a=14,
    lead=2,
    nt=1,
    nt_out=0,
    hnt=0,
    rotw2=1,
    f_pre=6,
    ntb=0,
    blk=1,
    lite=16,
    fine=0,
    skipw2=0,
    w2_pre=8,
    ln_bg=1,
    gap_c=10,
    gap_f=18,
    w2_at=16,
    lag=3,
    fh_early=0,
    fill=24,
    b_red=4,
    b_pre=0,
    tail2=0,
    skew=6,
    late=0,
    z_pub=12,

    ack_a=12,
    codepf=1,
    spin=200000,
    sleep=0,
)

FH, FZ, FU, FS = 0x10000, 0x30000, 0x50000, 0x88000
H_, Z_, U_, S_, DG = 0x100000, 0x300000, 0x500000, 0x700000, 0x800000
WS_BYTES = 0x900000
R_ = 131072
XN, HH, ZST = R_, R_ + 8704, R_ + 17408
ROWB = 1088

sX, sWA, sWB, sWS, sOUT, sB1, sB2, sCODE = 4, 8, 12, 16, 20, 24, 28, 32
sW, sNONCE, sD1, sF, sT, sD2, sLDS, sCNT = 36, 37, 38, 39, 40, 41, 42, 43
sROT, sAOFF, sBG = 44, 45, 46
sGA, sGB = 48, 52
sFLH, sFLZ, sFLU = 56, 57, 58
sROT2 = 64
sHO, sZO = 60, 62
sT0, sT1, sT2, sT3 = 76, 77, 78, 79
sP = 80
sQ = 82
sSK = 84
sMIR = 88
sM0, sM1 = 90, 92
sSTAMP = 94
vLANE, vNONCE, vZERO = 1, 2, 3
vDA, vDB = 4, 8
vTRA, vTRB = 12, 14
vA1, vA2 = 16, 18
vRW, vRR = 20, 23
vB1 = 24
vPOLL, vPA, vPB, vUST = 32, 33, 34, 35
vSTAMP = 39
vT = 40
ACC = (64, 96)
RING = 128
vXO, vB2, vZM = 36, 37, 38
vS0, vS1, vFSA = 58, 60, 62
vE = 208


def f32(x):
    return "0x%08x" % struct.unpack("<I", struct.pack("<f", x))[0]


class Stream:
    def __init__(self, name, srd, va, tr, g, off):
        self.name, self.srd, self.va, self.tr, self.g, self.off = name, srd, va, tr, g, off
        self.slot = {}


class Gen:
    def __init__(self, **kw):
        self.c = dict(DEFAULTS)
        assert set(kw) <= set(DEFAULTS), set(kw) - set(DEFAULTS)
        self.c.update(kw)
        assert self.c["ring"] >= 12
        self.e = Asm()
        self.nlab = 0
        self.pending = None
        self.A = Stream("A", sWA, vDA, vTRA, sGA, sBG)
        self.B = Stream("B", sWB, vDB, vTRB, sGB, sBG + 1)

    def lab(self, base):
        self.nlab += 1
        return f"L_{base}_{self.nlab}"

    def stamp(self, idx):
        if not self.c["diag"] or (self.c["diag"] == 2 and idx not in (0, 17, None)):
            return
        e = self.e
        if self.pending is not None:
            e(f"v_writelane_b32 {v(vSTAMP)}, {s(sSTAMP)}, {self.pending}")
        self.pending = idx
        if idx is not None:
            e(f"{'s_memtime' if idx in (22, 23) else 's_memrealtime'} {s(sSTAMP, 2)}")

    def flag_store(self, soff):
        e = self.e
        with e.atomic():
            e("s_mov_b64 exec, 1")
            e(f"buffer_store_dword {v(vNONCE)}, {v(vZERO)}, {s(sWS, 4)}, {s(soff)} offen sc1", tag="flag")
            e("s_mov_b64 exec, -1")

    def poll_blocking(self, loads):
        e = self.e
        top, done = self.lab("poll"), self.lab("polled")
        with e.atomic():
            e(f"s_mov_b32 {s(sCNT)}, {self.c['spin']}")
            e.label(top)
            for d, a, so in loads:
                e(f"buffer_load_dword {v(d)}, {v(a)}, {s(sWS, 4)}, {so} offen sc1")
            e.wait_all(lg=False)
            self.poll_test([d for d, _, _ in loads])
            e(f"s_cbranch_vccz {done}")
            if self.c["sleep"]:
                e(f"s_sleep {self.c['sleep']}")
            e(f"s_sub_u32 {s(sCNT)}, {s(sCNT)}, 1")
            e(f"s_cbranch_scc0 {top}")
            e.label(done)

    def poll_check(self, loads, before_spin=None):
        e = self.e
        fast = self.lab("fast")
        with e.atomic():
            self.poll_test([d for d, _, _ in loads])
            e(f"s_cbranch_vccz {fast}")
            st = e.state()
            if before_spin:
                before_spin()
            self.poll_blocking(loads)
            e.restore(st)
            e.label(fast)

    def poll_test(self, regs):
        e = self.e
        if len(regs) == 1:
            e(f"v_cmp_ne_u32 vcc, {v(regs[0])}, {v(vNONCE)}")
            return
        for r in regs:
            e(f"v_xor_b32 {v(r)}, {v(r)}, {v(vNONCE)}")
        for r in regs[1:]:
            e(f"v_or_b32 {v(regs[0])}, {v(regs[0])}, {v(r)}")
        e(f"v_cmp_ne_u32 vcc, 0, {v(regs[0])}")

    def dma_items(self, st, p, slot, gap, cold=False):
        e = self.e
        st.slot[p] = slot
        first_touch = cold or (p < 4 if st is self.A else self.c["ntb"] or p < 2 * self.c["rotw2"])
        nt = " nt" if self.c["nt"] == 2 or (self.c["nt"] and first_touch) else ""
        if self.c["skipw2"] and st is self.B and p >= self.c["skipw2"]:
            return []

        def first():
            e.wait_lg(("tr", slot))
            e(f"s_add_u32 m0, {s(sLDS)}, {slot * 4096}")
            if p % 2:
                e(f"s_add_u32 {s(st.off)}, {s(st.off)}, {s(st.g + 3)}")
            else:
                e(f"s_mul_i32 {s(st.off)}, {s(st.g)}, {s(st.g + 2)}")
            load(0)
            if p % 2 == 0:
                e(f"s_add_u32 {s(st.g)}, {s(st.g)}, 1")
                e(f"s_cmp_eq_u32 {s(st.g)}, {s(st.g + 1)}")
                e(f"s_cselect_b32 {s(st.g)}, 0, {s(st.g)}")

        def load(j):
            e(f"buffer_load_dwordx4 {v(st.va + j)}, {s(st.srd, 4)}, {s(st.off)} offen offset:{1024 * j}{nt} lds",
              tag=("w", st.name, p))

        return [(gap, first)] + [(gap, (lambda j=j: load(j))) for j in (1, 2, 3)]

    def tr_items(self, st, step, gap=1):
        e = self.e
        slot = st.slot[step // 2]

        def rd(pt, a):
            e.wait_vm(("w", st.name, step // 2))
            e(f"ds_read_b64_tr_b16 {a_(8 * step + 4 * pt + 2 * a, 2)}, {v(st.tr + pt)}"
              f" offset:{slot * 4096 + (step % 2) * 2048 + a * 512}", tag=("tr", slot))

        return [(gap, (lambda pt=pt, a=a: rd(pt, a))) for pt in range(2) for a in range(2)]

    def trp(self, st, p, gap=1):
        return self.tr_items(st, 2 * p, gap) + self.tr_items(st, 2 * p + 1, gap)

    def w_setup(self, st, which):
        e = self.e
        i, sw, t = vT + 2, vT + 3, vT + 4
        e(f"v_lshrrev_b32 {v(i)}, 3, {v(vLANE)}")
        e(f"v_and_b32 {v(sw)}, 7, {v(vLANE)}")
        e(f"v_lshrrev_b32 {v(t)}, 2, {v(vLANE)}")
        e(f"v_and_b32 {v(t)}, 4, {v(t)}")
        e(f"v_xor_b32 {v(sw)}, {v(sw)}, {v(t)}")
        if which == 1:
            e(f"s_mul_i32 {s(sT0)}, {s(sW)}, {512 * 3584}")
            e(f"s_lshl_b32 {s(sT2)}, {s(sF)}, 7")
            e(f"v_mul_u32_u24 {v(t)}, {64 * 3584}, {v(i)}")
            e(f"s_and_b32 {s(st.g)}, {s(sROT)}, 7")
            n, step, half = 8, 7168, 3584
        else:
            e(f"s_mul_i32 {s(sT0)}, {s(sW)}, {448 * 4096}")
            e(f"s_lshl_b32 {s(sT2)}, {s(sT)}, 7")
            e(f"v_and_b32 {v(t)}, 4, {v(i)}")
            e(f"v_add_lshl_u32 {v(t)}, {v(t)}, {v(i)}, 12")
            self.mod7(st.g)
            n, step, half = 7, 65536, 16384
        e(f"s_add_u32 {s(sT0)}, {s(sT0)}, {s(sT2)}")
        e(f"v_lshl_add_u32 {v(t)}, {v(sw)}, 4, {v(t)}")
        e(f"v_add_u32 {v(st.va)}, {s(sT0)}, {v(t)}")
        e(f"s_mov_b32 {s(st.g + 1)}, {n}")
        e(f"s_mov_b32 {s(st.g + 2)}, {4 * step}")
        e(f"s_mov_b32 {s(st.g + 3)}, {2 * step}")
        for j, off in ((1, half), (2, step), (3, step + half)):
            e(f"v_add_u32 {v(st.va + j)}, {off - 1024 * j}, {v(st.va)}")

    def mod7(self, dst):
        e = self.e
        e(f"s_mul_i32 {s(dst)}, {s(sROT2)}, 37")
        e(f"s_lshr_b32 {s(dst)}, {s(dst)}, 8")
        e(f"s_mul_i32 {s(dst)}, {s(dst)}, 7")
        e(f"s_sub_u32 {s(dst)}, {s(sROT2)}, {s(dst)}")

    def tr_setup(self, st, mask):
        e = self.e
        t = vT + 2
        e(f"v_bfe_u32 {v(t)}, {v(vLANE)}, 2, 2")
        e(f"v_lshrrev_b32 {v(t + 1)}, 5, {v(vLANE)}")
        e(f"v_lshlrev_b32 {v(t + 1)}, 10, {v(t + 1)}")
        e(f"v_lshl_add_u32 {v(t + 1)}, {v(t)}, 7, {v(t + 1)}")
        e(f"v_and_b32 {v(t + 2)}, 3, {v(vLANE)}")
        e(f"v_lshlrev_b32 {v(t + 2)}, 3, {v(t + 2)}")
        e(f"v_and_b32 {v(t + 3)}, 24, {v(vLANE)}")
        e(f"v_lshlrev_b32 {v(t)}, 1, {v(t + 3)}")
        e(f"v_and_b32 {v(t)}, 32, {v(t)}")
        e(f"v_lshlrev_b32 {v(t + 3)}, 3, {v(t + 3)}")
        e(f"v_and_b32 {v(t + 3)}, 64, {v(t + 3)}")
        e(f"v_or3_b32 {v(t + 2)}, {v(t + 2)}, {v(t)}, {v(t + 3)}")
        e(f"v_xor_b32 {v(t + 2)}, {s(mask)}, {v(t + 2)}")
        e(f"v_add3_u32 {v(st.tr)}, {v(t + 1)}, {v(t + 2)}, {s(sLDS)}")
        e(f"v_xor_b32 {v(st.tr + 1)}, 64, {v(st.tr)}")

    def prologue(self):
        e, c = self.e, self.c
        nt = " nt" if c["nt"] else ""
        e("s_cmp_ge_u32 s2, 256")
        e("s_cbranch_scc1 L_end")
        e(f"s_load_dwordx2 {s(sX, 2)}, s[0:1], 0")
        if c["codepf"]:
            e(f"s_getpc_b64 {s(sCODE, 2)}")
            e.label("L_pc")
            e(f"s_mov_b32 {s(sCODE + 2)}, L_code_end-L_pc")
            e(f"s_mov_b32 {s(sCODE + 3)}, 0x20000")
            e(f"s_lshr_b32 {s(sT0)}, s2, 3")
            e(f"s_lshl_b32 {s(sT0)}, {s(sT0)}, 10")
            e(f"v_lshrrev_b32 {v(vT)}, 5, v0")
            e(f"v_lshlrev_b32 {v(vT)}, 7, {v(vT)}")
            e(f"buffer_load_dword {v(vPA)}, {v(vT)}, {s(sCODE, 4)}, {s(sT0)} offen")
        for reg, off in ((sWS, 96), (sWA, 48), (sWB, 64), (sB1, 56), (sB2, 72), (sOUT, 80)):
            e(f"s_load_dwordx2 {s(reg, 2)}, s[0:1], {off}")
        if c["diag"]:
            e(f"v_mov_b32 {v(vSTAMP)}, 0")
        self.stamp(0)
        self.stamp(22)
        e(f"v_lshrrev_b32 {v(vT)}, 6, v0")
        e(f"v_and_b32 {v(vLANE)}, 63, v0")
        e(f"v_readfirstlane_b32 {s(sW)}, {v(vT)}")
        e(f"v_lshlrev_b32 {v(vT + 1)}, 4, {v(vLANE)}")
        e(f"v_lshl_add_u32 {v(vT + 1)}, {v(vT)}, 17, {v(vT + 1)}")
        e(f"s_lshr_b32 {s(sT0)}, s2, 6")
        e(f"s_lshl_b32 {s(sT0)}, {s(sT0)}, 19")
        e(f"s_and_b32 {s(sT1)}, s2, 63")
        e(f"s_lshl_b32 {s(sT1)}, {s(sT1)}, 10")
        e(f"s_add_u32 {s(sT0)}, {s(sT0)}, {s(sT1)}")
        e(f"s_add_u32 {s(sT1)}, {s(sT0)}, 65536")
        e(f"s_mov_b32 {s(sX + 2)}, 2097152")
        e(f"s_mov_b32 {s(sX + 3)}, 0x20000")
        e.wait_all(vm=False)
        e(f"buffer_load_dwordx4 v[64:67], {v(vT + 1)}, {s(sX, 4)}, {s(sT0)} offen{nt}")
        e(f"buffer_load_dwordx4 v[68:71], {v(vT + 1)}, {s(sX, 4)}, {s(sT1)} offen{nt}")
        e(f"s_load_dword {s(sNONCE)}, {s(sWS, 2)}, 0")
        for reg, n in ((sWA, 7340032), (sWB, 7340032), (sWS, WS_BYTES), (sOUT, 2097152), (sB1, 3584), (sB2, 4096)):
            e(f"s_mov_b32 {s(reg + 2)}, {n}")
            e(f"s_mov_b32 {s(reg + 3)}, 0x20000")
        e(f"s_lshr_b32 {s(sD2)}, s2, 5")
        e(f"s_bfe_u32 {s(sT1)}, s2, 0x20003")
        e(f"s_and_b32 {s(sT0)}, s2, 7")
        e(f"s_lshl2_add_u32 {s(sT)}, {s(sT0)}, {s(sT1)}")
        e(f"s_mul_i32 {s(sROT2)}, {s(sT1)}, {2 * c['rotc']}")
        e(f"s_min_u32 {s(sT2)}, {s(sD2)}, 6")
        e(f"s_mul_i32 {s(sT2)}, {s(sT2)}, {c['rotw2']}")
        e(f"s_add_u32 {s(sROT2)}, {s(sROT2)}, {s(sT2)}")
        e(f"s_lshr_b32 {s(sT0)}, {s(sT0)}, 1")
        e(f"s_mul_i32 {s(sF)}, {s(sT0)}, 7")
        e(f"s_and_b32 {s(sT0)}, s2, 1")
        e(f"s_lshl_b32 {s(sT0)}, {s(sT0)}, 2")
        e(f"s_lshr_b32 {s(sT2)}, s2, 6")
        e(f"s_add_u32 {s(sCNT)}, {s(sT0)}, {s(sT2)}")
        e(f"s_add_u32 {s(sT0)}, {s(sT0)}, {s(sT1)}")
        e(f"s_lshl_b32 {s(sT1)}, {s(sT1)}, 1")
        e(f"s_bfe_u32 {s(sD1)}, s2, 0x30003")
        e(f"s_cmp_eq_u32 {s(sT2)}, 3")
        e(f"s_cselect_b32 {s(sCNT)}, 3, {s(sCNT)}")
        e(f"s_cselect_b32 {s(sT1)}, {s(sT1)}, {s(sD1)}")
        e(f"s_cselect_b32 {s(sD1)}, {s(sT0)}, {s(sD1)}")
        e(f"s_add_u32 {s(sF)}, {s(sF)}, {s(sCNT)}")
        e(f"s_mul_i32 {s(sT1)}, {s(sT1)}, {c['rotw']}")
        e(f"s_mul_i32 {s(sT2)}, {s(sT2)}, {2 * c['rotc']}")
        e(f"s_add_u32 {s(sROT)}, {s(sT1)}, {s(sT2)}")
        e(f"s_lshl_b32 {s(sLDS)}, {s(sW)}, 15")
        e(f"s_lshl_b32 {s(sT3)}, {s(sW)}, 5")
        e(f"s_cmp_eq_u32 {s(sD2)}, 7")
        e("s_cbranch_scc1 L_first2")
        st0 = e.state()
        self.w_setup(self.A, 1)
        e("s_branch L_first")
        e.restore(st0)
        e.label("L_first2")
        e(f"s_mov_b64 {s(sWA, 2)}, {s(sWB, 2)}")
        e(f"s_and_b32 {s(sT3)}, {s(sT3)}, 64")
        self.w_setup(self.A, 2)
        e.label("L_first")
        for p in range(c["lead"]):
            e.bg += self.dma_items(self.A, p, p, c["gap_a"])
        e.run_bg(1)
        self.early_loads()
        self.tr_setup(self.A, sT3)
        e(f"v_mov_b32 {v(vZERO)}, 0")

    def x_tile(self):
        nt = " nt" if self.c["nt"] else ""
        for mt in range(2):
            self.e(f"buffer_load_dwordx4 {v(vE + 12 * mt, 4)}, {v(vXO)}, {s(sX, 4)}, 0 offen offset:{64 * mt}{nt}")

    def early_loads(self):
        e = self.e
        t, d0 = vT + 1, vT + 2
        e(f"s_lshr_b32 {s(sT0)}, {s(sW)}, 1")
        e(f"s_lshl1_add_u32 {s(sT0)}, {s(sT)}, {s(sT0)}")
        e(f"s_lshl_b32 {s(sT0)}, {s(sT0)}, 6")
        e(f"v_and_b32 {v(t)}, 31, {v(vLANE)}")
        e(f"v_lshl_add_u32 {v(t)}, {v(t)}, 1, {s(sT0)}")
        e(f"s_and_b32 {s(sT0)}, {s(sW)}, 1")
        e(f"s_lshl2_add_u32 {s(sT0)}, {s(sD2)}, {s(sT0)}")
        e(f"s_lshl_b32 {s(sT0)}, {s(sT0)}, 5")
        e(f"v_lshrrev_b32 {v(d0)}, 5, {v(vLANE)}")
        e(f"buffer_load_ushort {v(vB2)}, {v(t)}, {s(sB2, 4)}, 0 offen")
        e(f"v_lshl_add_u32 {v(vXO)}, {v(d0)}, 4, {s(sT0)}")
        e(f"v_lshl_add_u32 {v(vXO)}, {v(t)}, 9, {v(vXO)}")
        e(f"s_lshl2_add_u32 {s(sT0)}, {s(sF)}, {s(sW)}")
        e(f"s_lshl_b32 {s(sT0)}, {s(sT0)}, 5")
        e(f"v_lshlrev_b32 {v(d0)}, 3, {v(d0)}")
        e(f"v_lshrrev_b32 {v(t)}, 3, {v(vLANE)}")
        e(f"v_xor_b32 {v(t + 2)}, {v(t)}, {v(vLANE)}")
        e(f"v_and_b32 {v(t + 2)}, 7, {v(t + 2)}")
        e(f"v_lshlrev_b32 {v(t + 2)}, 4, {v(t + 2)}")
        e(f"v_lshl_add_u32 {v(t + 2)}, {v(t)}, 10, {v(t + 2)}")
        e(f"s_lshl2_add_u32 {s(sT1)}, {s(sT)}, {s(sW)}")
        e(f"s_lshl_b32 {s(sT1)}, {s(sT1)}, 7")
        e(f"s_add_u32 {s(sT1)}, {s(sT1)}, {s(sD2)}")
        e(f"s_lshl_b32 {s(sT1)}, {s(sT1)}, 7")
        e(f"v_add_u32 {v(t + 3)}, {8192 - 1024}, {v(t + 2)}")
        nt = " nt" if self.c["nt"] else ""
        with e.atomic():
            e(f"s_mov_b32 {s(sT2)}, m0")
            e(f"s_add_u32 m0, {s(sLDS)}, {7 * 4096}")
            e(f"buffer_load_dwordx4 {v(t + 2)}, {s(sX, 4)}, {s(sT1)} offen{nt} lds", tag="xt")
            e(f"buffer_load_dwordx4 {v(t + 3)}, {s(sX, 4)}, {s(sT1)} offen offset:1024{nt} lds", tag="xt")
            e(f"s_mov_b32 m0, {s(sT2)}")
        e(f"buffer_load_dwordx2 {v(vB1 + 4, 2)}, {v(d0)}, {s(sB1, 4)}, {s(sT0)} offen")
        e(f"buffer_load_dwordx2 {v(vB1 + 6, 2)}, {v(d0)}, {s(sB1, 4)}, {s(sT0)} offen offset:16")

    def hid_consts(self):
        e = self.e
        B1c, B1s, TWC, TWS, A2r, A2i, Asr, Asi, ZA = 128, 132, 136, 140, 144, 148, 152, 156, 160
        n, q, fn, fq4, base, ph = vT + 2, vT + 3, vT + 4, vT + 5, vT + 6, vT + 7
        th, c0, s0 = 96, 104, 112
        e(f"v_and_b32 {v(n)}, 15, {v(vLANE)}")
        e(f"v_lshrrev_b32 {v(q)}, 4, {v(vLANE)}")
        e(f"v_cvt_f32_ubyte0 {v(fn)}, {v(n)}")
        e(f"v_cvt_f32_ubyte0 {v(fq4)}, {v(q)}")
        e(f"v_mul_f32 {v(fq4)}, 4.0, {v(fq4)}")
        e(f"v_cmp_eq_u32 {s(sM0, 2)}, 0, {v(n)}")
        e(f"v_cmp_lt_u32 {s(sM1, 2)}, 7, {v(n)}")

        def angles(freq, consts, dst, phase=None):
            e(f"v_mul_f32 {v(base)}, {v(fq4)}, {v(freq)}")
            if phase is not None:
                e(f"v_add_f32 {v(base)}, {v(base)}, {v(phase)}")
            for i, k in enumerate(consts):
                e(f"v_fmamk_f32 {v(dst + i)}, {v(freq)}, {f32(k)}, {v(base)}")

        fr = vT + 8
        d1 = [0, 1, 2, 3, 16, 17, 18, 19]
        e(f"v_mul_f32 {v(fr)}, {f32(1 / 32)}, {v(fn)}")
        angles(fr, d1, th)
        for i in range(8):
            e(f"v_cos_f32 {v(c0 + i)}, {v(th + i)}")
        for i in range(4):
            e(f"v_cvt_pk_bf16_f32 {v(B1c + i)}, {v(c0 + 2 * i)}, {v(c0 + 2 * i + 1)}")
        e(f"v_cndmask_b32 {v(fr)}, {v(fr)}, 0.5, {s(sM0, 2)}")
        e(f"v_mov_b32 {v(ph)}, {f32(0.25)}")
        e(f"v_cndmask_b32 {v(ph)}, {v(ph)}, 0, {s(sM0, 2)}")
        angles(fr, d1, th, ph)
        for i in range(8):
            e(f"v_cos_f32 {v(c0 + i)}, {v(th + i)}")
        for i in range(4):
            e(f"v_cvt_pk_bf16_f32 {v(B1s + i)}, {v(c0 + 2 * i)}, {v(c0 + 2 * i + 1)}")
        e(f"v_mul_f32 {v(fr)}, {f32(1 / 512)}, {v(fn)}")
        angles(fr, range(4), th)
        for i in range(4):
            e(f"v_cos_f32 {v(TWC + i)}, {v(th + i)}")
            e(f"v_sin_f32 {v(TWS + i)}, {v(th + i)}")
        e(f"v_mul_f32 {v(fr)}, {f32(1 / 16)}, {v(fn)}")
        angles(fr, range(4), th)
        for i in range(4):
            e(f"v_cos_f32 {v(c0 + i)}, {v(th + i)}")
            e(f"v_sin_f32 {v(s0 + i)}, {v(th + i)}")
        e(f"v_mov_b32 {v(ph)}, 0x80008000")
        e(f"v_cndmask_b32 {v(ph)}, 0, {v(ph)}, {s(sM1, 2)}")
        for i in range(2):
            e(f"v_cvt_pk_bf16_f32 {v(A2r + i)}, {v(c0 + 2 * i)}, {v(c0 + 2 * i + 1)}")
            e(f"v_cvt_pk_bf16_f32 {v(A2r + 2 + i)}, {v(s0 + 2 * i)}, {v(s0 + 2 * i + 1)}")
            e(f"v_cvt_pk_bf16_f32 {v(A2i + i)}, -{v(s0 + 2 * i)}, -{v(s0 + 2 * i + 1)}")
            e(f"v_xor_b32 {v(A2i + i)}, {v(A2i + i)}, {v(ph)}")
            e(f"v_xor_b32 {v(A2i + 2 + i)}, {v(A2r + i)}, {v(ph)}")
        e(f"v_add_f32 {v(th)}, {f32(1 / 16)}, {v(fr)}")
        e(f"v_add_f32 {v(th + 1)}, {f32(-15 / 32)}, {v(fr)}")
        e(f"v_cndmask_b32 {v(fr)}, {v(th)}, {v(th + 1)}, {s(sM1, 2)}")
        angles(fr, range(4), th)
        for i in range(4):
            e(f"v_cos_f32 {v(c0 + i)}, {v(th + i)}")
            e(f"v_sin_f32 {v(s0 + i)}, {v(th + i)}")
        for i in range(2):
            e(f"v_cvt_pk_bf16_f32 {v(th + i)}, {v(c0 + 2 * i)}, {v(c0 + 2 * i + 1)}")
            e(f"v_cvt_pk_bf16_f32 {v(th + 2 + i)}, -{v(s0 + 2 * i)}, -{v(s0 + 2 * i + 1)}")
        for i in range(2):
            e(f"v_cndmask_b32 {v(Asr + i)}, {v(th + i)}, 0, {s(sM1, 2)}")
            e(f"v_cndmask_b32 {v(Asr + 2 + i)}, 0, {v(th + i)}, {s(sM1, 2)}")
            e(f"v_cndmask_b32 {v(Asi + i)}, {v(th + 2 + i)}, 0, {s(sM1, 2)}")
            e(f"v_cndmask_b32 {v(Asi + 2 + i)}, 0, {v(th + 2 + i)}, {s(sM1, 2)}")
        e(f"v_cmp_lt_u32 {s(sM1, 2)}, 1, {v(q)}")
        e(f"s_lshl_b32 {s(sT0)}, {s(sW)}, 2")
        e(f"s_add_u32 {s(sT0)}, {s(sT0)}, {ZST}")
        for j in range(4):
            m32, t1, t2 = th, th + 1, th + 2
            e(f"v_lshlrev_b32 {v(m32)}, 7, {v(q)}")
            e(f"v_add_u32 {v(m32)}, {32 * j}, {v(m32)}")
            e(f"v_add_u32 {v(t1)}, {v(m32)}, {v(n)}")
            e(f"v_sub_u32 {v(t2)}, 512, {v(t1)}")
            e(f"v_cndmask_b32 {v(t1)}, {v(t1)}, {v(t2)}, {s(sM1, 2)}")
            e(f"v_add_u32 {v(t2)}, 32, {v(m32)}")
            e(f"v_and_b32 {v(t2)}, 255, {v(t2)}")
            e(f"v_subrev_u32 {v(m32)}, 240, {v(m32)}")
            e(f"v_cndmask_b32 {v(t2)}, {v(t2)}, {v(m32)}, {s(sM1, 2)}")
            e(f"v_cndmask_b32 {v(t1)}, {v(t1)}, {v(t2)}, {s(sM0, 2)}")
            e(f"v_lshl_add_u32 {v(ZA + j)}, {v(t1)}, 5, {s(sT0)}")

    def ln_stats(self, a, b, pivot):
        e = self.e
        t = vT
        ta, tb = 96, 104
        if pivot:
            e(f"v_readlane_b32 {s(sP)}, {v(a)}, 0")
            e(f"v_readlane_b32 {s(sP + 1)}, {v(b)}, 0")
            for k in range(4):
                e(f"v_pk_add_f32 {v(ta + 2 * k, 2)}, {v(a + 2 * k, 2)}, {s(sP, 2)} op_sel_hi:[1,0] neg_lo:[0,1] neg_hi:[0,1]")
                e(f"v_pk_add_f32 {v(tb + 2 * k, 2)}, {v(b + 2 * k, 2)}, {s(sP, 2)} op_sel:[0,1] op_sel_hi:[1,1] neg_lo:[0,1] neg_hi:[0,1]")
            a, b = ta, tb
        sa, qa, sb, qb = t, t + 4, t + 8, t + 12
        for (x, sm, sq) in ((a, sa, qa), (b, sb, qb)):
            e(f"v_pk_add_f32 {v(sm, 2)}, {v(x, 2)}, {v(x + 2, 2)}")
            e(f"v_pk_mul_f32 {v(sq, 2)}, {v(x, 2)}, {v(x, 2)}")
            e(f"v_pk_add_f32 {v(sm + 2, 2)}, {v(x + 4, 2)}, {v(x + 6, 2)}")
            e(f"v_pk_mul_f32 {v(sq + 2, 2)}, {v(x + 4, 2)}, {v(x + 4, 2)}")
        for (x, sm, sq) in ((a, sa, qa), (b, sb, qb)):
            e(f"v_pk_fma_f32 {v(sq, 2)}, {v(x + 2, 2)}, {v(x + 2, 2)}, {v(sq, 2)}")
            e(f"v_pk_fma_f32 {v(sq + 2, 2)}, {v(x + 6, 2)}, {v(x + 6, 2)}, {v(sq + 2, 2)}")
            e(f"v_pk_add_f32 {v(sm, 2)}, {v(sm, 2)}, {v(sm + 2, 2)}")
        for (sm, sq) in ((sa, qa), (sb, qb)):
            e(f"v_pk_add_f32 {v(sq, 2)}, {v(sq, 2)}, {v(sq + 2, 2)}")
            e(f"v_add_f32 {v(sm)}, {v(sm)}, {v(sm + 1)}")
        e(f"v_add_f32 {v(qa)}, {v(qa)}, {v(qa + 1)}")
        e(f"v_add_f32 {v(qb)}, {v(qb)}, {v(qb + 1)}")
        e(f"v_permlane32_swap_b32 {v(sa)}, {v(sb)}")
        e(f"v_permlane32_swap_b32 {v(qa)}, {v(qb)}")
        e(f"v_add_f32 {v(sa)}, {v(sa)}, {v(sb)}")
        e(f"v_add_f32 {v(qa)}, {v(qa)}, {v(qb)}")
        e(f"v_permlane16_swap_b32 {v(sa)}, {v(qa)}")
        e(f"v_add_f32 {v(sa)}, {v(sa)}, {v(qa)}")
        for m in ("quad_perm:[1,0,3,2]", "quad_perm:[2,3,0,1]", "row_half_mirror", "row_mirror"):
            e(f"v_add_f32_dpp {v(sa)}, {v(sa)}, {v(sa)} {m} row_mask:0xf bank_mask:0xf")
        e(f"v_mov_b32 {v(qa)}, {v(sa)}")
        e(f"v_permlane16_swap_b32 {v(sa)}, {v(qa)}")
        e(f"v_mul_f32 {v(sa)}, {f32(1 / 512)}, {v(sa)}")
        e(f"v_mul_f32 {v(qa)}, {f32(1 / 512)}, {v(qa)}")
        e(f"v_fma_f32 {v(qa)}, -{v(sa)}, {v(sa)}, {v(qa)}")
        e(f"v_max_f32 {v(qa)}, 0, {v(qa)}")
        if pivot:
            e(f"v_mov_b32 {v(sb)}, {s(sP)}")
            e(f"v_mov_b32 {v(qb)}, {s(sP + 1)}")
            e(f"v_permlane32_swap_b32 {v(sb)}, {v(qb)}")
            e(f"v_add_f32 {v(sa)}, {v(sa)}, {v(sb)}")
        e(f"v_cvt_pk_bf16_f32 {v(qa)}, 0, {v(qa)}")
        e(f"v_cvt_pk_bf16_f32 {v(sa)}, 0, {v(sa)}")
        e(f"v_add_f32 {v(qa)}, {f32(1e-5)}, {v(qa)}")
        e(f"v_cvt_pk_bf16_f32 {v(qa)}, 0, {v(qa)}")
        e(f"v_sqrt_f32 {v(qa)}, {v(qa)}")
        e(f"v_readlane_b32 {s(sP)}, {v(sa)}, 0")
        e(f"v_cvt_pk_bf16_f32 {v(qa)}, 0, {v(qa)}")
        e(f"v_rcp_f32 {v(qa)}, {v(qa)}")
        e(f"v_readlane_b32 {s(sP + 1)}, {v(sa)}, 32")
        e(f"v_readlane_b32 {s(sQ)}, {v(qa)}, 0")
        e(f"v_readlane_b32 {s(sQ + 1)}, {v(qa)}, 32")

    def ln_apply(self, a, b, pa, pb):
        e = self.e
        sel = ("op_sel_hi:[1,0]", "op_sel:[0,1] op_sel_hi:[1,1]")
        for k in range(4):
            for r, x in enumerate((a, b)):
                e(f"v_pk_add_f32 {v(x + 2 * k, 2)}, {v(x + 2 * k, 2)}, {s(sP, 2)} {sel[r]} neg_lo:[0,1] neg_hi:[0,1]")
        for k in range(8):
            for x in (a, b):
                e(f"v_cvt_pk_bf16_f32 {v(x + k)}, 0, {v(x + k)}")
        for k in range(4):
            for r, x in enumerate((a, b)):
                e(f"v_pk_mul_f32 {v(x + 2 * k, 2)}, {v(x + 2 * k, 2)}, {s(sQ, 2)} {sel[r]}")
        for k in range(4):
            for x, p in ((a, pa), (b, pb)):
                e(f"v_cvt_pk_bf16_f32 {v(p + k)}, {v(x + 2 * k)}, {v(x + 2 * k + 1)}")

    def unpack(self, p, x, n=4):
        e = self.e
        for k in range(n):
            e(f"v_lshlrev_b32 {v(x + 2 * k)}, 16, {v(p + k)}")
            e(f"v_and_b32 {v(x + 2 * k + 1)}, 0xffff0000, {v(p + k)}")

    def phase1(self):
        e, c = self.e, self.c
        a, b, pa, pb = 72, 80, 64, 68
        wr, hr, hs = vT + 16, vT + 17, vT + 18
        e(f"s_mul_i32 {s(sT0)}, {s(sW)}, {2 * ROWB}")
        e(f"s_add_u32 {s(sT0)}, {s(sT0)}, {XN}")
        e(f"v_lshl_add_u32 {v(wr)}, {v(vLANE)}, 4, {s(sT0)}")
        e(f"v_bfe_u32 {v(vT)}, {v(vLANE)}, 2, 2")
        e(f"v_mul_u32_u24 {v(vT)}, {ROWB}, {v(vT)}")
        e(f"v_lshrrev_b32 {v(vT + 1)}, 4, {v(vLANE)}")
        e(f"v_lshl_add_u32 {v(vT)}, {v(vT + 1)}, 5, {v(vT)}")
        e(f"v_and_b32 {v(vT + 1)}, 3, {v(vLANE)}")
        e(f"v_lshl_add_u32 {v(vT)}, {v(vT + 1)}, 3, {v(vT)}")
        e(f"s_lshl_b32 {s(sT0)}, {s(sW)}, 8")
        e(f"s_add_u32 {s(sT0)}, {s(sT0)}, {HH}")
        e(f"v_add_u32 {v(hr)}, {s(sT0)}, {v(vT)}")
        e(f"v_lshrrev_b32 {v(vT)}, 5, {v(vLANE)}")
        e(f"v_and_b32 {v(vT + 1)}, 31, {v(vLANE)}")
        e(f"v_lshlrev_b32 {v(vT + 1)}, 4, {v(vT + 1)}")
        e(f"v_lshl_add_u32 {v(hs)}, {v(vT)}, 17, {v(vT + 1)}")
        e(f"s_lshl_b32 {s(sT0)}, {s(sW)}, 19")
        e(f"s_lshl_b32 {s(sT1)}, s2, 9")
        e(f"s_add_u32 {s(sT1)}, {s(sT0)}, {s(sT1)}")
        e(f"s_add_u32 {s(sHO)}, {s(sT1)}, {H_}")
        e(f"s_add_u32 {s(sHO + 1)}, {s(sT1)}, {H_ + 262144}")
        e(f"s_lshl_b32 {s(sT1)}, s2, 6")
        e(f"s_add_u32 {s(sT1)}, {s(sT0)}, {s(sT1)}")
        e(f"s_add_u32 {s(sZO)}, {s(sT1)}, {Z_}")
        e(f"s_add_u32 {s(sZO + 1)}, {s(sT1)}, {Z_ + 262144}")
        e(f"s_lshl_b32 {s(sT0)}, {s(sW)}, 8")
        e(f"s_add_u32 {s(sT0)}, {s(sT0)}, s2")
        e(f"s_lshl_b32 {s(sT0)}, {s(sT0)}, 7")
        e(f"s_add_u32 {s(sFLH)}, {s(sT0)}, {FH}")
        e(f"s_add_u32 {s(sFLZ)}, {s(sT0)}, {FZ}")
        e(f"s_lshl_b32 {s(sT0)}, {s(sW)}, 11")
        e(f"s_add_u32 {s(sT0)}, {s(sT0)}, {ZST}")
        e(f"v_lshl_add_u32 {v(vT + 19)}, {v(vLANE)}, 4, {s(sT0)}")
        e(f"v_lshrrev_b32 {v(vT)}, 2, {v(vLANE)}")
        e(f"v_and_b32 {v(vT + 1)}, 3, {v(vLANE)}")
        e(f"v_lshlrev_b32 {v(vT + 1)}, 4, {v(vT + 1)}")
        e(f"v_lshl_add_u32 {v(vT + 20)}, {v(vT)}, 14, {v(vT + 1)}")
        e(f"v_lshlrev_b32 {v(vT)}, 3, {v(vLANE)}")
        e(f"v_sub_u32 {v(vT + 21)}, {v(wr)}, {v(vT)}")
        e.wait_all(vm=False)
        e(f"s_mul_i32 {s(sNONCE)}, {s(sNONCE)}, 0x9e3779b1")
        e(f"s_add_u32 {s(sNONCE)}, {s(sNONCE)}, 0x7f4a7c15")
        e(f"v_mov_b32 {v(vNONCE)}, {s(sNONCE)}")
        self.stamp(18)
        e.hold += 0 if c["ln_bg"] else 1
        self.unpack(pa, a)
        self.stamp(1)
        self.unpack(pb, b)
        self.ln_stats(a, b, True)
        self.ln_apply(a, b, pa, pb)
        e(f"ds_write_b128 {v(wr)}, {v(pa, 4)}")
        e(f"ds_write_b128 {v(wr)}, {v(pb, 4)} offset:{ROWB}")
        self.unpack(pa, a)
        self.unpack(pb, b)
        self.ln_stats(a, b, False)
        self.ln_apply(a, b, 88, 92)
        e(f"ds_write_b128 {v(wr)}, {v(88, 4)} offset:{HH - XN}")
        e(f"ds_write_b128 {v(wr)}, {v(92, 4)} offset:{HH - XN + ROWB}")
        e.wait_all(vm=False)
        e("s_barrier")
        for h in range(2):
            for r in range(2):
                e(f"ds_read_b64_tr_b16 {v(64 + 4 * h + 2 * r, 2)}, {v(hr)} offset:{h * 128 + r * 4 * ROWB}")
        for r in range(2):
            for h in range(2):
                e(f"ds_read_b64_tr_b16 {v(72 + 4 * r + 2 * h, 2)}, {v(vT + 21)} offset:{r * ROWB + h * 512}")
        e(f"buffer_store_dwordx4 v[64:67], {v(hs)}, {s(sWS, 4)}, {s(sHO)} offen sc1", tag="H")
        e(f"buffer_store_dwordx4 v[68:71], {v(hs)}, {s(sWS, 4)}, {s(sHO + 1)} offen sc1", tag="H")
        e.hold -= 0 if c["ln_bg"] else 1
        self.stamp(2)

    def hid_fft(self):
        e = self.e
        B1c, B1s, TWC, TWS, A2r, A2i, Asr, Asi, ZA = 128, 132, 136, 140, 144, 148, 152, 156, 160
        M = "v_mfma_f32_16x16x32_bf16"
        Tr, Ti, Ur, Ui, Bf, Zr, Zi, Sr, Si = 80, 88, 96, 104, 112, 164, 172, 180, 188
        for r in range(2):
            e(f"{M} {v(Tr + 4 * r, 4)}, {v(72 + 4 * r, 4)}, {v(B1c, 4)}, 0")
            e(f"{M} {v(Ti + 4 * r, 4)}, {v(72 + 4 * r, 4)}, {v(B1s, 4)}, 0")
        for r in range(2):
            for k in (0, 2):
                o = 4 * r + k
                e(f"v_pk_mul_f32 {v(Ur + o, 2)}, {v(Tr + o, 2)}, {v(TWC + k, 2)}")
                e(f"v_pk_mul_f32 {v(Ui + o, 2)}, {v(Ti + o, 2)}, {v(TWC + k, 2)}")
            for k in (0, 2):
                o = 4 * r + k
                e(f"v_pk_fma_f32 {v(Ur + o, 2)}, {v(Ti + o, 2)}, {v(TWS + k, 2)}, {v(Ur + o, 2)}")
                e(f"v_pk_fma_f32 {v(Ui + o, 2)}, {v(Tr + o, 2)}, {v(TWS + k, 2)}, {v(Ui + o, 2)} neg_lo:[1,0,0] neg_hi:[1,0,0]")
            for k in range(2):
                e(f"v_cvt_pk_bf16_f32 {v(Bf + 4 * r + k)}, {v(Ur + 4 * r + 2 * k)}, {v(Ur + 4 * r + 2 * k + 1)}")
                e(f"v_cvt_pk_bf16_f32 {v(Bf + 4 * r + 2 + k)}, {v(Ui + 4 * r + 2 * k)}, {v(Ui + 4 * r + 2 * k + 1)}")
        for r in range(2):
            for dst, A in ((Zr, A2r), (Sr, Asr), (Zi, A2i), (Si, Asi)):
                e(f"{M} {v(dst + 4 * r, 4)}, {v(A, 4)}, {v(Bf + 4 * r, 4)}, 0")
        for dst, alt in ((Zr, Sr), (Zi, Si)):
            for k in range(8):
                e(f"v_cndmask_b32 {v(dst + k)}, {v(dst + k)}, {v(alt + k)}, {s(sM0, 2)}")
        for part, z in enumerate((Zr, Zi)):
            for j in range(4):
                e(f"v_cvt_pk_bf16_f32 {v(Tr + 4 * part + j)}, {v(z + j)}, {v(z + 4 + j)}")
                e(f"ds_write_b32 {v(ZA + j)}, {v(Tr + 4 * part + j)} offset:{16 * part}")
        if self.c["fh_early"]:
            self.publish("H", sFLH)
        xa = 112
        e(f"v_bfe_u32 {v(xa)}, {v(vXO)}, 4, 3")
        e(f"v_xor_b32 {v(xa)}, {v(xa)}, {v(vLANE)}")
        e(f"v_and_b32 {v(xa)}, 7, {v(xa)}")
        e(f"v_bfe_u32 {v(xa + 1)}, {v(vXO)}, 14, 2")
        e(f"v_lshlrev_b32 {v(xa + 1)}, 15, {v(xa + 1)}")
        e(f"v_lshl_add_u32 {v(xa)}, {v(xa)}, 4, {v(xa + 1)}")
        e(f"v_and_b32 {v(xa + 1)}, 15, {v(vLANE)}")
        e(f"v_lshl_add_u32 {v(xa)}, {v(xa + 1)}, 7, {v(xa)}")
        e(f"v_xor_b32 {v(xa + 1)}, 64, {v(xa)}")
        e.wait_vm("xt")
        e.wait_all(vm=False)
        e("s_barrier")
        for mt in range(2):
            e(f"ds_read_b128 {v(vE + 12 * mt, 4)}, {v(xa + mt)} offset:{7 * 4096}")
        e(f"ds_read_b128 v[64:67], {v(vT + 19)}")
        e(f"ds_read_b128 v[68:71], {v(vT + 19)} offset:1024")
        e(f"buffer_store_dwordx4 v[64:67], {v(vT + 20)}, {s(sWS, 4)}, {s(sZO)} offen sc1", tag="Z")
        e(f"buffer_store_dwordx4 v[68:71], {v(vT + 20)}, {s(sWS, 4)}, {s(sZO + 1)} offen sc1", tag="Z")
        if not self.c["fh_early"]:
            self.publish("H", sFLH)
        self.stamp(3)

    def publish(self, tag, soff):
        self.e.wait_vm(tag)
        self.flag_store(soff)

    def gemm_addresses(self):
        e = self.e
        l16 = vT
        e(f"v_lshlrev_b32 {v(l16)}, 4, {v(vLANE)}")
        e(f"s_lshl_b32 {s(sT0)}, {s(sD1)}, 18")
        e(f"s_add_u32 {s(sT0)}, {s(sT0)}, {s(sLDS)}")
        e(f"s_add_u32 {s(sT0)}, {s(sT0)}, {H_}")
        e(f"v_add_u32 {v(vA1)}, {s(sT0)}, {v(l16)}")
        e(f"v_add_u32 {v(vA1 + 1)}, 131072, {v(vA1)}")
        e(f"s_mul_i32 {s(sT0)}, {s(sD1)}, 224")
        e(f"s_lshl2_add_u32 {s(sT1)}, {s(sF)}, {s(sW)}")
        e(f"s_add_u32 {s(sT0)}, {s(sT0)}, {s(sT1)}")
        e(f"s_lshl_b32 {s(sT0)}, {s(sT0)}, 10")
        e(f"s_add_u32 {s(sT0)}, {s(sT0)}, {U_}")
        e(f"v_add_u32 {v(vUST)}, {s(sT0)}, {v(l16)}")
        e(f"s_lshl3_add_u32 {s(sT0)}, {s(sD2)}, {s(sW)}")
        e(f"s_mul_i32 {s(sT0)}, {s(sT0)}, {28 * 1024}")
        e(f"s_add_u32 {s(sT0)}, {s(sT0)}, {U_}")
        e(f"s_and_b32 {s(sT1)}, {s(sW)}, 1")
        e(f"s_lshl_b32 {s(sT1)}, {s(sT1)}, 8")
        e(f"v_xor_b32 {v(vT + 1)}, {s(sT1)}, {v(l16)}")
        e(f"v_add_u32 {v(vA2)}, {s(sT0)}, {v(vT + 1)}")
        e(f"v_add_u32 {v(vA2 + 1)}, 114688, {v(vA2)}")
        for q in (1, 2, 3):
            e(f"s_xor_b32 {s(sT0)}, {s(sW)}, {q}")
            e(f"s_mul_i32 {s(sT0)}, {s(sT0)}, 6144")
            e(f"s_add_u32 {s(sT0)}, {s(sT0)}, {R_ + (q - 1) * 2048}")
            e(f"v_add_u32 {v(vRW + q - 1)}, {s(sT0)}, {v(l16)}")
        e(f"s_mul_i32 {s(sT0)}, {s(sW)}, 6144")
        e(f"s_add_u32 {s(sT0)}, {s(sT0)}, {R_}")
        e(f"v_add_u32 {v(vRR)}, {s(sT0)}, {v(l16)}")
        t, d0, tm, u = vT + 1, vT + 2, vT + 3, vT + 4
        e(f"v_lshrrev_b32 {v(t)}, 10, {v(vXO)}")
        e(f"v_bfe_u32 {v(d0)}, {v(vXO)}, 1, 9")
        e(f"v_cmp_eq_u32 vcc, 0, {v(d0)}")
        e(f"v_mov_b32 {v(u)}, 0xffff0000")
        e(f"v_cndmask_b32 {v(vZM)}, -1, {v(u)}, vcc")
        e(f"s_cmp_ge_u32 {s(sD2)}, 4")
        e(f"s_cselect_b32 {s(sMIR)}, 0xffff, -1")
        e(f"s_cselect_b64 {s(sM1, 2)}, -1, 0")
        e(f"s_cselect_b32 {s(sT0)}, 3, 0")
        for k in range(4):
            e(f"s_xor_b32 {s(sSK + k)}, {s(sT0)}, {k}")
            e(f"s_lshl_b32 {s(sSK + k)}, {s(sSK + k)}, 13")
        e(f"v_sub_u32 {v(tm)}, 2048, {v(t)}")
        e(f"v_and_b32 {v(tm)}, 2047, {v(tm)}")
        e(f"v_cndmask_b32 {v(tm)}, {v(t)}, {v(tm)}, {s(sM1, 2)}")
        e(f"v_lshrrev_b32 {v(u)}, 7, {v(tm)}")
        e(f"v_lshlrev_b32 {v(u)}, 9, {v(u)}")
        e(f"v_and_b32 {v(t)}, 31, {v(tm)}")
        e(f"v_lshl_add_u32 {v(u)}, {v(t)}, 4, {v(u)}")
        e(f"v_bfe_u32 {v(t)}, {v(tm)}, 5, 2")
        e(f"v_lshl_add_u32 {v(u)}, {v(t)}, 2, {v(u)}")
        e(f"v_add_u32 {v(u)}, {S_}, {v(u)}")
        for mt in range(2):
            e(f"v_lshrrev_b32 {v(t)}, 1, {v(d0)}")
            e(f"v_add_u32 {v(t)}, {16 * mt}, {v(t)}")
            e(f"v_sub_u32 {v(tm)}, 256, {v(t)}")
            e(f"v_and_b32 {v(vT + 5)}, 127, {v(tm)}")
            e(f"v_cndmask_b32 {v(vT + 5)}, {v(t)}, {v(vT + 5)}, {s(sM1, 2)}")
            e(f"v_lshl_add_u32 {v(vS0 + mt)}, {v(vT + 5)}, 13, {v(u)}")
            e(f"v_add_u32 {v(t)}, 1, {v(t)}")
            e(f"v_subrev_u32 {v(tm)}, 4, {v(tm)}")
            e(f"v_cndmask_b32 {v(vT + 5)}, {v(t)}, {v(tm)}, {s(sM1, 2)}")
            e(f"v_lshl_add_u32 {v(vS1 + mt)}, {v(vT + 5)}, 13, {v(u)}")
        e(f"s_lshl_b32 {s(sT0)}, {s(sD2)}, 5")
        e(f"v_min_u32 {v(t)}, 31, {v(vLANE)}")
        e(f"v_add_u32 {v(t)}, {s(sT0)}, {v(t)}")
        e(f"s_sub_u32 {s(sT0)}, 256, {s(sT0)}")
        e(f"v_min_u32 {v(tm)}, 32, {v(vLANE)}")
        e(f"v_sub_u32 {v(tm)}, {s(sT0)}, {v(tm)}")
        e(f"v_and_b32 {v(tm)}, 127, {v(tm)}")
        e(f"v_cndmask_b32 {v(t)}, {v(t)}, {v(tm)}, {s(sM1, 2)}")
        e(f"v_lshlrev_b32 {v(t)}, 7, {v(t)}")
        e(f"v_add_u32 {v(vFSA)}, {FS}, {v(t)}")
        e(f"s_mul_i32 {s(sT0)}, {s(sD1)}, 28")
        e(f"s_add_u32 {s(sT0)}, {s(sT0)}, {s(sF)}")
        e(f"s_lshl2_add_u32 {s(sT0)}, {s(sT0)}, {s(sW)}")
        e(f"s_lshl_b32 {s(sT0)}, {s(sT0)}, 7")
        e(f"s_add_u32 {s(sFLU)}, {s(sT0)}, {FU}")
        e(f"s_add_u32 {s(sFLU + 1)}, {s(sT0)}, {FU + 8 * 112 * 128}")

    def fu_poll_addr(self):
        e = self.e
        e(f"s_lshl2_add_u32 {s(sT0)}, {s(sD2)}, {s(sW)}")
        e(f"s_mul_i32 {s(sT0)}, {s(sT0)}, {28 * 128}")
        e(f"s_add_u32 {s(sT0)}, {s(sT0)}, {FU}")
        e(f"v_min_u32 {v(vPOLL)}, 27, {v(vLANE)}")
        e(f"v_lshl_add_u32 {v(vPOLL)}, {v(vPOLL)}, 7, {s(sT0)}")

    def red_write(self, acc):
        return [(f"ds_write_b128 {v(vRW + q - 1)}, {v(acc + 8 * q + 4 * h, 4)} offset:{1024 * h}", "red")
                for q in (2, 3, 1) for h in range(2)]

    def red_read(self, acc, pk=True):
        out = [(f"ds_read_b128 {v(acc + 8 * q + 4 * h, 4)}, {v(vRR)} offset:{2048 * (q - 1) + 1024 * h}", None)
               for q in (1, 2, 3) for h in range(2)]
        for d, o in ((0, 8), (16, 24), (0, 16)):
            if pk:
                out += [(f"v_pk_add_f32 {v(acc + d + k, 2)}, {v(acc + d + k, 2)}, {v(acc + o + k, 2)}", None)
                        for k in range(0, 8, 2)]
            else:
                out += [(f"v_add_f32 {v(acc + d + k)}, {v(acc + d + k)}, {v(acc + o + k)}", None) for k in range(8)]
        return out

    def gelu(self, acc, pk=True):
        x, t = acc, acc + 8
        k2 = -2.0 * 0.7978845608028654 * 1.4426950408889634
        R, P = range(8), range(0, 8, 2)
        o = [f"v_cvt_pk_bf16_f32 {v(x + i)}, 0, {v(x + i)}" for i in R]
        if pk:
            o += [f"v_pk_add_f32 {v(x + i, 2)}, {v(x + i, 2)}, {v(vB1 + i, 2)}" for i in P]
            o += [f"s_mov_b32 {s(sP)}, {f32(k2 * 0.044715)}", f"v_mov_b32 {v(t + 8)}, {f32(k2)}"]
            o += [f"v_cvt_pk_bf16_f32 {v(x + i)}, 0, {v(x + i)}" for i in R]
            o += [f"v_pk_mul_f32 {v(t + i, 2)}, {v(x + i, 2)}, {v(x + i, 2)}" for i in P]
            o += [f"v_pk_fma_f32 {v(t + i, 2)}, {v(t + i, 2)}, {s(sP, 2)}, {v(t + 8, 2)} op_sel_hi:[1,0,0]" for i in P]
            o += [f"v_pk_mul_f32 {v(t + i, 2)}, {v(t + i, 2)}, {v(x + i, 2)}" for i in P]
            o += [f"v_exp_f32 {v(t + i)}, {v(t + i)}" for i in R]
            o += [f"v_pk_add_f32 {v(t + i, 2)}, {v(t + i, 2)}, 1.0 op_sel_hi:[1,0]" for i in P]
            o += [f"v_rcp_f32 {v(t + i)}, {v(t + i)}" for i in R]
            o += [f"v_pk_mul_f32 {v(x + i, 2)}, {v(x + i, 2)}, {v(t + i, 2)}" for i in P]
        else:
            o += [f"v_add_f32 {v(x + i)}, {v(x + i)}, {v(vB1 + i)}" for i in R]
            o += [f"v_cvt_pk_bf16_f32 {v(x + i)}, 0, {v(x + i)}" for i in R]
            o += [f"v_mul_f32 {v(t + i)}, {v(x + i)}, {v(x + i)}" for i in R]
            o += [f"v_mov_b32 {v(t + 8)}, {f32(k2)}"]
            o += [f"v_fmamk_f32 {v(t + i)}, {v(t + i)}, {f32(k2 * 0.044715)}, {v(t + 8)}" for i in R]
            o += [f"v_mul_f32 {v(t + i)}, {v(t + i)}, {v(x + i)}" for i in R]
            o += [f"v_exp_f32 {v(t + i)}, {v(t + i)}" for i in R]
            o += [f"v_add_f32 {v(t + i)}, 1.0, {v(t + i)}" for i in R]
            o += [f"v_rcp_f32 {v(t + i)}, {v(t + i)}" for i in R]
            o += [f"v_mul_f32 {v(x + i)}, {v(x + i)}, {v(t + i)}" for i in R]
        o += [f"v_cvt_pk_bf16_f32 {v(acc + 20 + i)}, {v(x + 2 * i)}, {v(x + 2 * i + 1)}" for i in range(4)]
        return [(i, None) for i in o]

    def a_load(self, which, n, step):
        e = self.e
        mt, st = divmod(step, n)
        va = vA1 if which == 1 else vA2
        slot = RING + 4 * (step % self.c["ring"])
        e(f"buffer_load_dwordx4 {v(slot, 4)}, {v(va + mt)}, {s(sWS, 4)}, {s(sAOFF)} offen offset:{(st % 4) * 1024} sc1"
          + (" nt" if self.c["hnt"] & which else ""))
        if st % 4 == 3:
            e(f"s_add_u32 {s(sAOFF)}, {s(sAOFF)}, 4096")
            if which == 1:
                e(f"s_and_b32 {s(sAOFF)}, {s(sAOFF)}, 0x7fff")
            else:
                e(f"s_cmp_eq_u32 {s(sAOFF)}, {7 * 4096}")
                e(f"s_cselect_b32 {s(sAOFF)}, 0, {s(sAOFF)}")

    def mfma(self, which, n, step, pt):
        mt, st = divmod(step, n)
        slot = v(RING + 4 * (step % self.c["ring"]), 4)
        acc = v(ACC[mt] + 16 * pt, 16)
        w = a_(8 * st + 4 * pt, 4)
        A, B = (w, slot) if which == 1 else (slot, w)
        self.e(f"v_mfma_f32_32x32x16_bf16 {acc}, {A}, {B}, {acc if st else 0}")

    def mfma_run(self, which, n, first, last, limit, gap, skew=0):
        ring = self.c["ring"]
        seq = [(st, pt) for st in range(first, last - skew) for pt in range(2)]
        seq += [(st, pt) for pt in (1, 0) for st in range(last - skew, last)]
        for i, (st, pt) in enumerate(seq):
            self.mfma(which, n, st, pt)
            loaded = pt == 0 and first < st < last - skew and st - 1 + ring < limit
            if loaded:
                self.a_load(which, n, st - 1 + ring)
            gap(i, st, loaded)
            ph = 2 * which - 1 + st // n
            j = i
            if self.c["fine"] == ph and j % 8 == 0:
                self.stamp(24 + j // 8)

    def spend(self, fill, cycles):
        while fill:
            item = fill[0]
            if callable(item):
                cost = 0
            elif callable(item[1]):
                cost = 8
            else:
                t = item[0]
                cost = (24 if t.startswith(("ds_write", "s_barrier")) else 12 if t.startswith("ds_read") else
                        8 if t.startswith(("v_exp", "v_rcp")) else 0 if t.startswith(("s_", "pause")) else 4)
            if cost > cycles:
                return
            if not callable(item) and item[0] == "pause":
                fill.pop(0)
                return
            self.run_fill(fill, 1)
            cycles -= cost

    def run_fill(self, fill, k=10 ** 6):
        while k and fill:
            item = fill.pop(0)
            k -= 1
            if callable(item):
                item()
            elif callable(item[1]):
                item[1]()
            else:
                self.e(item[0], tag=item[1])

    def gemm1_role(self):
        e, c, A, B = self.e, self.c, self.A, self.B
        ring, gap, lead, lag = c["ring"], c["gap_c"], c["lead"], c["lag"]
        e.run_bg()
        self.w_setup(B, 2)
        e(f"s_and_b32 {s(sT3)}, {s(sT3)}, 64")
        self.tr_setup(B, sT3)
        order = [(A, p) for p in range(lead, 16)]
        k = max(0, min(len(order), c["w2_at"] - lead))
        order[k:k] = [(B, p) for p in range(min(2, c["w2_pre"]))]
        order += [(B, p) for p in range(2, c["w2_pre"])]
        free = [x for x in range(7) if x >= lead]
        inflight = list(range(lead))
        early_b = c["w2_at"] < 16
        if early_b:
            free = [x for x in free if x < 5]

        def refill():
            if not order:
                while inflight:
                    d = inflight.pop(0)
                    e.bg += self.trp(A, d)
                    free.append(A.slot[d])
                return
            st, p = order.pop(0)
            if st is B and p < 2 and early_b:
                slot = 5 + p
            else:
                while inflight and (not free or len(inflight) > lag):
                    d = inflight.pop(0)
                    e.bg += self.trp(A, d)
                    free.append(A.slot[d])
                slot = free.pop(0)
            e.bg += self.dma_items(st, p, slot, gap)
            if st is A:
                inflight.append(p)
            e.bg.append((0, refill))

        refill()
        if c["late"]:
            self.hid_consts()
        self.hid_fft()
        self.gemm_addresses()
        e.wait_lg(None)
        e("s_barrier")
        free.append(7)
        e.run_bg(c["z_pub"])
        self.publish("Z", sFLZ)
        self.stamp(4)
        self.unpack(vB1 + 4, vB1)
        e(f"s_lshr_b32 {s(sT0)}, {s(sD1)}, 1")
        e(f"s_lshl2_add_u32 {s(sT0)}, {s(sT0)}, {s(sW)}")
        e(f"s_lshl_b32 {s(sT0)}, {s(sT0)}, 13")
        e(f"s_add_u32 {s(sT0)}, {s(sT0)}, {FH}")
        e(f"v_lshlrev_b32 {v(vPOLL)}, 7, {v(vLANE)}")
        e(f"s_and_b32 {s(sAOFF)}, {s(sROT)}, 7")
        e(f"s_lshl_b32 {s(sAOFF)}, {s(sAOFF)}, 12")
        e.run_bg()
        self.stamp(5)
        self.poll_blocking([(vPA, vPOLL, s(sT0))])
        self.stamp(6)
        for st in range(ring):
            self.a_load(1, 32, st)
        self.fu_poll_addr()
        fill, dq = [], []
        for p in range(c["w2_pre"], 8):
            dq += self.dma_items(B, p, free.pop(0), 0)
        every = 62 / max(1, len(dq))
        S = dict(sent=0, ua=None, ntr=0, nxt=8)
        trq = []
        redb = self.red_write(ACC[1])

        reda = self.red_write(ACC[0])
        ust = f"buffer_store_dwordx4 {v(ACC[0] + 20, 4)}, {v(vUST)}, {s(sWS, 4)}, 0 offen sc1"

        def gap_a(i, step, loaded):
            if dq and not loaded and S["sent"] * every <= i:
                self.run_fill(dq, 1)
                S["sent"] += 1
            if c["blk"] and i >= 64 - c["skew"] + 2:
                self.run_fill(reda, 1 if len(reda) > 2 else 0)

        def gap_b(i, step, loaded):
            nonlocal fill, dq, trq
            budget = c["lite"] if step + ring <= 64 else c["fill"]
            if fill:
                if i >= 2:
                    self.spend(fill, c["fill"])
                if not fill:
                    S["ua"] = i
                    self.stamp(19)
                return
            if step + ring > 64:
                if not dq and S["nxt"] < 14 and S["ntr"] - (len(trq) + 3) // 4 >= 2 * (S["nxt"] - 8) + 3:
                    dq = self.dma_items(B, S["nxt"], B.slot[S["nxt"] - 8], 0)
                    S["nxt"] += 1
                if i % 2 or c["tail2"]:
                    self.run_fill(dq, 1)
            while S["ntr"] < 16 and S["ntr"] < step - 32 and len(trq) < 8:
                trq += self.tr_items(B, S["ntr"])
                S["ntr"] += 1
            self.spend(trq, budget)
            if i == 48 and not c["blk"]:
                e("s_barrier")
            if i == min(63, S["ua"] + 2 * c["ack_a"]):
                self.stamp(20)
                self.publish("Ua", sFLU)
                self.stamp(8)
            if i >= 64 - c["skew"] + 2:
                self.run_fill(redb, 1 if len(redb) > 2 else 0)

        self.mfma_run(1, 32, 0, 32, 64, gap_a, c["skew"] if c["blk"] else 0)
        self.run_fill(dq)
        self.stamp(7)
        if c["blk"]:
            self.run_fill(reda)
            for st in range(32 + ring - 1 - c["skew"], 32 + ring):
                self.a_load(1, 32, st)
            e.wait_lg("red")
            e("s_barrier")
            self.run_fill(self.red_read(ACC[0]) + self.gelu(ACC[0]))
            e(ust, tag="Ua")
            e("s_barrier")
            S["ua"] = 0
            self.stamp(19)
        else:
            self.a_load(1, 32, 32 + ring - 1)
            pause = [("pause", None)]
            fill = reda + pause + [lambda: e.wait_lg("red"), ("s_barrier", None)]
            rd = self.red_read(ACC[0], False)
            fill += rd[:6] + 2 * pause + rd[6:] + self.gelu(ACC[0], False) + [(ust, "Ua")]
        self.mfma_run(1, 32, 32, 64, 64, gap_b, c["skew"])
        assert not fill and S["ua"] < 48
        while S["ntr"] < 16:
            trq += self.tr_items(B, S["ntr"])
            S["ntr"] += 1
        e.bg += trq
        nxt = S["nxt"]
        self.stamp(9)
        e.bg += [(6, f) for _, f in dq]
        while nxt < 14:
            e.bg += self.dma_items(B, nxt, B.slot[nxt - 8], 6)
            nxt += 1
        self.run_fill(redb)
        e.wait_lg("red")
        e("s_barrier")
        rest = self.red_read(ACC[1]) + self.gelu(ACC[1])
        self.run_fill(rest, len(rest) - 30)
        e.run_bg()
        e(f"buffer_load_dword {v(vPA)}, {v(vPOLL)}, {s(sWS, 4)}, 0 offen sc1")
        self.run_fill(rest)
        e(f"s_mov_b32 {s(sT3)}, 114688")
        e(f"buffer_store_dwordx4 {v(ACC[1] + 20, 4)}, {v(vUST)}, {s(sWS, 4)}, {s(sT3)} offen sc1", tag="Ub")
        e("s_barrier")
        self.mod7(sAOFF)
        e(f"s_lshl_b32 {s(sAOFF)}, {s(sAOFF)}, 12")
        self.stamp(10)
        self.poll_check([(vPA, vPOLL, "0")], lambda: self.publish("Ub", sFLU + 1))
        self.stamp(21)
        for st in range(16, 28):
            self.run_fill(self.tr_items(B, st))
            self.a_load(2, 28, st - 16)

    def fft_role(self):
        e, c = self.e, self.c
        sEP = sF
        A = self.A
        e.run_bg()
        q = []
        for p in range(c["lead"], c["f_pre"]):
            q += self.dma_items(A, p, p, c["gap_f"], cold=True)
        if c["late"]:
            self.hid_consts()
        self.hid_fft()
        q.insert(4, (1, lambda: (self.publish("Z", sFLZ), self.stamp(4))))
        e.bg += q[:16]
        self.gemm_addresses()
        e.wait_lg(None)
        e("s_barrier")
        e.bg += q[16:]
        e(f"s_lshl2_add_u32 {s(sEP)}, {s(sT)}, {s(sW)}")
        ZIN, B1, A2 = 128, 192, 224
        TW = 160
        th, c0, s0, pk = 64, 72, 80, 88
        lo, hi, fr, base = vT, vT + 1, vT + 2, vT + 3
        e(f"v_and_b32 {v(lo)}, 31, {v(vLANE)}")
        e(f"v_lshrrev_b32 {v(hi)}, 5, {v(vLANE)}")
        e(f"v_cvt_f32_ubyte0 {v(lo)}, {v(lo)}")
        e(f"v_cvt_f32_ubyte0 {v(hi)}, {v(hi)}")
        e(f"v_mul_f32 {v(fr)}, {f32(1 / 32)}, {v(lo)}")
        e(f"v_mul_f32 {v(base)}, {f32(-0.25)}, {v(hi)}")
        for bq in range(4):
            for i in range(8):
                e(f"v_fmamk_f32 {v(th + i)}, {v(fr)}, {f32(8 * bq + i)}, {v(base)}")
            for i in range(8):
                e(f"v_cos_f32 {v(c0 + i)}, {v(th + i)}")
                e(f"v_sin_f32 {v(s0 + i)}, {v(th + i)}")
            for i in range(4):
                e(f"v_cvt_pk_bf16_f32 {v(pk + i)}, {v(c0 + 2 * i)}, {v(c0 + 2 * i + 1)}")
                e(f"v_cvt_pk_bf16_f32 {v(pk + 4 + i)}, -{v(s0 + 2 * i)}, -{v(s0 + 2 * i + 1)}")
            for i in range(8):
                e(f"v_accvgpr_write_b32 {a_(B1 + 8 * bq + i)}, {v(pk + i)}")
        e(f"v_mul_f32 {v(fr)}, {f32(1 / 64)}, {v(lo)}")
        e(f"v_mul_f32 {v(base)}, 4.0, {v(hi)}")
        e(f"v_mul_f32 {v(base)}, {v(base)}, {v(fr)}")
        for tm in range(4):
            order = [(0, 0), (0, 2), (1, 0), (1, 2), (0, 1), (0, 3), (1, 1), (1, 3)]
            for i, (i0, j) in enumerate(order):
                e(f"v_fmamk_f32 {v(th + i)}, {v(fr)}, {f32(16 * tm + 8 * i0 + j)}, {v(base)}")
            for i in range(8):
                e(f"v_cos_f32 {v(c0 + i)}, {v(th + i)}")
                e(f"v_sin_f32 {v(s0 + i)}, {v(th + i)}")
            for par in range(2):
                for k in range(2):
                    o = 4 * par + 2 * k
                    e(f"v_cvt_pk_bf16_f32 {v(pk + 4 * par + k)}, {v(c0 + o)}, {v(c0 + o + 1)}")
                    e(f"v_cvt_pk_bf16_f32 {v(pk + 4 * par + 2 + k)}, {v(s0 + o)}, {v(s0 + o + 1)}")
            for i in range(8):
                e(f"v_accvgpr_write_b32 {a_(A2 + 8 * tm + i)}, {v(pk + i)}")
        e(f"v_mul_f32 {v(fr)}, {f32(1 / 2048)}, {v(lo)}")
        e(f"v_mul_f32 {v(base)}, 4.0, {v(hi)}")
        e(f"v_mul_f32 {v(base)}, {v(base)}, {v(fr)}")
        for tm in range(4):
            for i in range(8):
                e(f"v_fmamk_f32 {v(th + i)}, {v(fr)}, {f32(16 * tm + 8 * (i // 4) + i % 4)}, {v(base)}")
            for i in range(8):
                e(f"v_cos_f32 {v(TW + 16 * tm + i)}, {v(th + i)}")
                e(f"v_sin_f32 {v(TW + 16 * tm + 8 + i)}, {v(th + i)}")
        e.run_bg()
        self.stamp(5)
        e(f"s_lshr_b32 {s(sT0)}, {s(sEP)}, 5")
        e(f"s_lshl_b32 {s(sT0)}, {s(sT0)}, 15")
        e(f"s_add_u32 {s(sT0)}, {s(sT0)}, {FZ}")
        e(f"s_add_u32 {s(sT1)}, {s(sT0)}, 8192")
        e(f"s_add_u32 {s(sT2)}, {s(sT0)}, 16384")
        e(f"s_add_u32 {s(sT3)}, {s(sT0)}, 24576")
        e(f"v_lshlrev_b32 {v(vPOLL)}, 7, {v(vLANE)}")
        za = vT + 4
        e(f"v_and_b32 {v(za)}, 15, {v(vLANE)}")
        e(f"v_lshlrev_b32 {v(za)}, 6, {v(za)}")
        e(f"v_bfe_u32 {v(za + 1)}, {v(vLANE)}, 4, 1")
        e(f"v_lshl_add_u32 {v(za)}, {v(za + 1)}, 5, {v(za)}")
        e(f"v_lshrrev_b32 {v(za + 1)}, 5, {v(vLANE)}")
        e(f"v_lshl_add_u32 {v(za)}, {v(za + 1)}, 4, {v(za)}")
        self.poll_blocking([(vT + 8 + k, vPOLL, s(sT0 + k)) for k in range(4)])
        self.stamp(6)
        e(f"s_lshl_b32 {s(sT0)}, {s(sEP)}, 14")
        e(f"s_add_u32 {s(sT0)}, {s(sT0)}, {Z_}")
        for k in range(1, 4):
            e(f"s_add_u32 {s(sT0 + k)}, {s(sT0)}, {4096 * k}")
        for tm in range(4):
            for bq in range(4):
                e(f"buffer_load_dwordx4 {a_(ZIN + 16 * tm + 4 * bq, 4)}, {v(za)}, {s(sWS, 4)}, {s(sT0 + bq)} offen"
                  f" offset:{1024 * tm} sc1")
        skip = self.lab("non")
        e(f"s_cmp_lg_u32 {s(sEP)}, 0")
        e(f"s_cbranch_scc1 {skip}")
        st = e.state()
        e(f"s_mov_b32 {s(sCNT)}, 0")
        self.flag_store(sCNT)
        e.wait_all(lg=False)
        e.restore(st)
        e.label(skip)
        M = "v_mfma_f32_32x32x16_bf16"
        AC1 = (64, 224)
        AC2 = 96
        Ur, Bf = vT, vB1

        def stage1(tm):
            r = AC1[tm % 2]
            return [(f"{M} {v(r + 16 * part, 16)}, {a_(ZIN + 16 * tm + 4 * bq, 4)}, {a_(B1 + 8 * bq + 4 * part, 4)}, "
                     f"{v(r + 16 * part, 16) if bq else 0}", None) for bq in range(4) for part in range(2)]

        def twiddle(tm, e2):
            r = AC1[tm % 2] + 8 * e2
            im = r + 16
            cs, sn = TW + 16 * tm, TW + 16 * tm + 8
            o = []
            o += [f"v_mul_f32 {v(Ur + k)}, {v(r + k)}, {v(cs + k)}" for k in range(8)]
            o += [f"v_mul_f32 {v(Ur + 8 + k)}, {v(im + k)}, {v(cs + k)}" for k in range(8)]
            o += [f"v_fmac_f32 {v(Ur + k)}, {v(im + k)}, {v(sn + k)}" for k in range(8)]
            o += [f"v_fma_f32 {v(Ur + 8 + k)}, -{v(r + k)}, {v(sn + k)}, {v(Ur + 8 + k)}" for k in range(8)]
            for par in range(2):
                for part in range(2):
                    for i0 in range(2):
                        x = Ur + 8 * part + 4 * i0 + par
                        o.append(f"v_cvt_pk_bf16_f32 {v(Bf + 4 * par + 2 * part + i0)}, {v(x)}, {v(x + 2)}")
            for par in range(2):
                acc = v(AC2 + 32 * e2 + 16 * par, 16)
                o.append(f"{M} {acc}, {a_(A2 + 8 * tm + 4 * par, 4)}, {v(Bf + 4 * par, 4)}, {acc if tm else 0}")
            return [(i, None) for i in o]

        for p in range(c["f_pre"], 8):
            e.bg += self.dma_items(A, p, p, c["gap_f"])
        self.run_fill(stage1(0), 99)
        for tm in range(4):
            m = stage1(tm + 1) if tm < 3 else []
            work = twiddle(tm, 0) + twiddle(tm, 1)
            while work or m:
                self.run_fill(m, 1)
                self.run_fill(work, 7)
        e.run_bg()
        self.stamp(7)
        e(f"s_lshl_b32 {s(sT0)}, {s(sEP)}, 13")
        e(f"s_add_u32 {s(sT0)}, {s(sT0)}, {S_}")
        e(f"s_add_u32 {s(sT1)}, {s(sT0)}, 4096")
        e(f"v_lshlrev_b32 {v(za)}, 4, {v(vLANE)}")
        out = 64
        for i in range(4):
            for t2 in range(2):
                neg = " neg_lo:[0,1] neg_hi:[0,1]" if t2 else ""
                for j in (0, 2):
                    k = 4 * i + j
                    e(f"v_pk_add_f32 {v(Ur + 8 + j, 2)}, {v(AC2 + k, 2)}, {v(AC2 + 16 + k, 2)}{neg}")
                    e(f"v_pk_add_f32 {v(Ur + 12 + j, 2)}, {v(AC2 + 32 + k, 2)}, {v(AC2 + 48 + k, 2)}{neg}")
                o = out + 4 * (2 * i + t2)
                for j in range(4):
                    e(f"v_cvt_pk_bf16_f32 {v(o + j)}, {v(Ur + 8 + j)}, {v(Ur + 12 + j)}")
                e(f"buffer_store_dwordx4 {v(o, 4)}, {v(za)}, {s(sWS, 4)}, {s(sT0 + t2)} offen offset:{1024 * i} sc1", tag="S")
        for p in range(8):
            self.run_fill(self.trp(A, p))
            if 0 < p < 7:
                self.run_fill(self.dma_items(A, p + 7, p - 1, 0))
        e(f"s_lshl_b32 {s(sT2)}, {s(sEP)}, 7")
        e(f"s_add_u32 {s(sFLU + 1)}, {s(sT2)}, {FS}")
        self.fu_poll_addr()
        self.mod7(sAOFF)
        e(f"s_lshl_b32 {s(sAOFF)}, {s(sAOFF)}, 12")
        self.publish("S", sFLU + 1)
        self.x_tile()
        self.stamp(9)
        for st in range(16, 28):
            self.run_fill(self.tr_items(A, st))
        self.poll_blocking([(vPA, vPOLL, "0")])
        self.stamp(10)
        self.stamp(None)
        e.wait_all()
        for st in range(12):
            self.a_load(2, 28, st)

    def gate(self, mt, pk=True):
        e = self.e
        y, t = ACC[mt], ACC[mt] + 8
        R = range(8)
        o = self.red_write(y) + [lambda: e.wait_lg("red"), ("s_barrier", None)] + self.red_read(y, pk)
        p = [f"v_permlane32_swap_b32 {v(y + j)}, {v(y + 4 + j)}" for j in range(4)]
        p += [f"v_cvt_pk_bf16_f32 {v(y + i)}, 0, {v(y + i)}" for i in R]
        P = range(0, 8, 2)
        nl2e = f32(-1.4426950408889634)
        if pk:
            p += [f"v_pk_add_f32 {v(y + i, 2)}, {v(y + i, 2)}, {v(vB2 - 1, 2)} op_sel:[0,1] op_sel_hi:[1,1]" for i in P]
            p += [f"s_mov_b32 {s(sP)}, {nl2e}"]
            p += [f"v_cvt_pk_bf16_f32 {v(y + i)}, 0, {v(y + i)}" for i in R]
            p += [f"v_pk_mul_f32 {v(t + i, 2)}, {v(y + i, 2)}, {s(sP, 2)} op_sel_hi:[1,0]" for i in P]
            p += [f"v_exp_f32 {v(t + i)}, {v(t + i)}" for i in R]
            p += [f"v_pk_add_f32 {v(t + i, 2)}, {v(t + i, 2)}, 1.0 op_sel_hi:[1,0]" for i in P]
            p += [f"v_rcp_f32 {v(t + i)}, {v(t + i)}" for i in R]
            p += [f"v_pk_mul_f32 {v(y + i, 2)}, {v(y + i, 2)}, {v(t + i, 2)}" for i in P]
        else:
            p += [f"v_add_f32 {v(y + i)}, {v(y + i)}, {v(vB2)}" for i in R]
            p += [f"v_cvt_pk_bf16_f32 {v(y + i)}, 0, {v(y + i)}" for i in R]
            p += [f"v_mul_f32 {v(t + i)}, {nl2e}, {v(y + i)}" for i in R]
            p += [f"v_exp_f32 {v(t + i)}, {v(t + i)}" for i in R]
            p += [f"v_add_f32 {v(t + i)}, 1.0, {v(t + i)}" for i in R]
            p += [f"v_rcp_f32 {v(t + i)}, {v(t + i)}" for i in R]
            p += [f"v_mul_f32 {v(y + i)}, {v(y + i)}, {v(t + i)}" for i in R]
        p += [f"v_cvt_pk_bf16_f32 {v(y + i)}, 0, {v(y + i)}" for i in R]
        return o + [(i, None) for i in p]

    def operands(self, mt, dst):
        X, W = vE + 12 * mt, vE + 12 * mt + 4
        p = [f"v_bfi_b32 {v(W + k)}, {s(sMIR)}, {v(W + k)}, {v(W + k + 1)}" for k in range(4)]
        if mt == 0:
            p.append(f"v_and_b32 {v(W)}, {v(W)}, {v(vZM)}")
        for src, d in ((W, dst), (X, dst + 8)):
            for k in range(4):
                p.append(f"v_lshlrev_b32 {v(d + 2 * k)}, 16, {v(src + k)}")
                p.append(f"v_and_b32 {v(d + 2 * k + 1)}, 0xffff0000, {v(src + k)}")
        return [(i, None) for i in p]

    def finish(self, mt, src, pk=True):
        y, X = ACC[mt], vE + 12 * mt
        def two(op, o):
            if pk:
                return [f"v_pk_{op}_f32 {v(y + i, 2)}, {v(y + i, 2)}, {v(o + i, 2)}" for i in range(0, 8, 2)]
            return [f"v_{op}_f32 {v(y + i)}, {v(y + i)}, {v(o + i)}" for i in range(8)]
        p = two("mul", src)
        p += [f"v_cvt_pk_bf16_f32 {v(y + i)}, 0, {v(y + i)}" for i in range(8)]
        p += two("add", src + 8)
        p += [f"v_cvt_pk_bf16_f32 {v(X + k)}, {v(y + 2 * k)}, {v(y + 2 * k + 1)}" for k in range(4)]
        p += [f"buffer_store_dwordx4 {v(X, 4)}, {v(vXO)}, {s(sOUT, 4)}, 0 offen offset:{64 * mt}" + (" nt" if self.c["nt_out"] else "")]
        return [(i, None) for i in p]

    def gemm2(self):
        e, c = self.e, self.c
        ring = c["ring"]
        for st in range(12, ring):
            self.a_load(2, 28, st)
        e(f"v_lshlrev_b32 {v(vB2)}, 16, {v(vB2)}")
        e(f"s_mov_b32 {s(sT2)}, {8 * 112 * 128}")
        self.publish("Ub", sFLU + 1)
        self.stamp(11)

        def gap_a(i, step, loaded):
            if i == 45:
                e(f"buffer_load_dword {v(vPA)}, {v(vPOLL)}, {s(sWS, 4)}, {s(sT2)} offen sc1")
            if i == 47:
                e(f"buffer_load_dword {v(vPB)}, {v(vFSA)}, {s(sWS, 4)}, 0 offen sc1")

        self.mfma_run(2, 28, 0, 28, 28, gap_a)
        self.stamp(12)
        self.poll_check([(vPA, vPOLL, s(sT2)), (vPB, vFSA, "0")])
        self.stamp(13)
        first = self.gate(0, False)
        for stp in range(28, 28 + ring):
            self.a_load(2, 28, stp)
            if stp >= 28 + c["b_red"]:
                self.run_fill(first, 1)
        for mt in range(2):
            W = vE + 12 * mt + 4
            e(f"buffer_load_dword {v(W)}, {v(vS0 + mt)}, {s(sWS, 4)}, 0 offen sc1")
            for k in range(4):
                e(f"buffer_load_dword {v(W + 1 + k)}, {v(vS1 + mt)}, {s(sWS, 4)}, {s(sSK + k)} offen sc1")
        self.run_fill(first, c["b_pre"])
        self.stamp(14)
        fill = first + self.operands(0, ACC[0] + 8) + self.finish(0, ACC[0] + 8, False) + self.operands(1, vT)
        last = self.gate(1)

        def gap_b(i, step, loaded):
            if i == 44:
                e("s_barrier")
            self.spend(fill, c["lite"] if step + ring <= 56 else c["fill"])
            if 56 - c["skew"] + 2 <= i < 56 - c["skew"] + 6:
                self.run_fill(last, 1)

        self.mfma_run(2, 28, 28, 56, 56, gap_b, c["skew"])
        self.run_fill(fill)
        self.stamp(15)
        self.run_fill(last + self.finish(1, vT))
        self.stamp(16)

    def build(self):
        e, c = self.e, self.c
        self.prologue()
        if not c["late"]:
            self.hid_consts()
        self.phase1()
        e(f"s_cmp_eq_u32 {s(sD2)}, 7")
        e("s_cbranch_scc1 L_fft")
        st = e.state()
        pend = self.pending
        self.gemm1_role()
        self.stamp(None)
        end1 = e.state()
        self.pending = pend
        e("s_branch L_gemm2")
        e.restore(st)
        e.label("L_fft")
        self.fft_role()
        e.restore(end1)
        e.label("L_gemm2")
        self.gemm2()
        if c["diag"]:
            e.wait_all()
            self.stamp(17)
            self.stamp(23)
            self.stamp(None)
            e(f"s_lshl_b32 {s(sT0)}, s2, 2")
            e(f"s_add_u32 {s(sT0)}, {s(sT0)}, {s(sW)}")
            e(f"s_lshl_b32 {s(sT0)}, {s(sT0)}, 8")
            e(f"s_add_u32 {s(sT0)}, {s(sT0)}, {DG}")
            e(f"v_lshlrev_b32 {v(vT)}, 2, {v(vLANE)}")
            e(f"buffer_store_dword {v(vSTAMP)}, {v(vT)}, {s(sWS, 4)}, {s(sT0)} offen")
        e.label("L_end")
        e("s_endpgm")
        e.label("L_code_end")
        head = open(f"cdna_kernels/{NAME}.s.ref").read().split("; Override")[0]
        return (head + "; @launch grid=(256,1,1) block=(256,1,1) lds=163840\n"
                '.amdgcn_target "amdgcn-amd-amdhsa--gfx950"\n.text\n'
                f".globl {NAME}_kernel\n.p2align 8\n.type {NAME}_kernel,@function\n{NAME}_kernel:\n"
                + e.text() +
                '.section .rodata,"a"\n.p2align 6\n'
                f".amdhsa_kernel {NAME}_kernel\n"
                "  .amdhsa_next_free_vgpr 512\n  .amdhsa_next_free_sgpr 102\n  .amdhsa_accum_offset 256\n"
                "  .amdhsa_group_segment_fixed_size 0\n  .amdhsa_kernarg_size 104\n  .amdhsa_user_sgpr_count 2\n"
                "  .amdhsa_user_sgpr_kernarg_segment_ptr 1\n  .amdhsa_system_sgpr_workgroup_id_x 1\n"
                ".end_amdhsa_kernel\n")


if __name__ == "__main__":
    out = sys.argv[1]
    kw = {k: int(x) for k, x in (a.split("=") for a in sys.argv[2:])}
    g = Gen(**kw)
    open(out, "w").write(g.build())
    print(out, "instructions:", g.e.n)
```

```python
import struct, sys
from asmgen import Asm, v, a_, s

NAME = "recurrent_scan__spectral_fnet__mixer_token_mlp__prompt"

DEFAULTS = dict(
    diag=0,
    ring=16,
    rotc=0,
    rotw=1,
    gap_a=14,
    lead=2,
    nt=1,
    nt_out=0,
    hnt=0,
    rotw2=1,
    f_pre=6,
    ntb=0,
    blk=1,
    lite=16,
    dbg=0,
    fine=0,
    skipw2=0,
    w2_pre=8,
    ln_bg=1,
    gap_c=10,
    gap_f=18,
    w2_at=16,
    lag=3,
    fh_early=0,
    fill=24,
    b_red=4,
    b_pre=0,
    tail2=0,
    skew=6,
    late=0,
    z_pub=12,

    ack_a=12,
    codepf=1,
    spin=200000,
    sleep=0,
)

FH, FZ, FU, FS = 0x10000, 0x30000, 0x50000, 0x88000
H_, Z_, U_, S_, DG = 0x100000, 0x300000, 0x500000, 0x700000, 0x800000
WS_BYTES = 0x900000
R_ = 131072
XN, HH, ZST = R_, R_ + 8704, R_ + 17408
ROWB = 1088

sX, sWA, sWB, sWS, sOUT, sB1, sB2, sCODE = 4, 8, 12, 16, 20, 24, 28, 32
sW, sNONCE, sD1, sF, sT, sD2, sLDS, sCNT = 36, 37, 38, 39, 40, 41, 42, 43
sROT, sAOFF, sBG = 44, 45, 46
sGA, sGB = 48, 52
sFLH, sFLZ, sFLU = 56, 57, 58
sROT2 = 64
sHO, sZO = 60, 62
sT0, sT1, sT2, sT3 = 76, 77, 78, 79
sP = 80
sQ = 82
sSK = 84
sMIR = 88
sM0, sM1 = 90, 92
sSTAMP = 94
vLANE, vNONCE, vZERO = 1, 2, 3
vDA, vDB = 4, 8
vTRA, vTRB = 12, 14
vA1, vA2 = 16, 18
vRW, vRR = 20, 23
vB1 = 24
vPOLL, vPA, vPB, vUST = 32, 33, 34, 35
vSTAMP = 39
vT = 40
ACC = (64, 96)
RING = 128
vXO, vB2, vZM = 36, 37, 38
vS0, vS1, vFSA = 58, 60, 62
vE = 208


def f32(x):
    return "0x%08x" % struct.unpack("<I", struct.pack("<f", x))[0]


class Stream:
    def __init__(self, name, srd, va, tr, g, off):
        self.name, self.srd, self.va, self.tr, self.g, self.off = name, srd, va, tr, g, off
        self.slot = {}


class Gen:
    def __init__(self, **kw):
        self.c = dict(DEFAULTS)
        assert set(kw) <= set(DEFAULTS), set(kw) - set(DEFAULTS)
        self.c.update(kw)
        assert self.c["ring"] >= 12
        self.e = Asm()
        self.nlab = 0
        self.pending = None
        self.A = Stream("A", sWA, vDA, vTRA, sGA, sBG)
        self.B = Stream("B", sWB, vDB, vTRB, sGB, sBG + 1)

    def lab(self, base):
        self.nlab += 1
        return f"L_{base}_{self.nlab}"

    def stamp(self, idx):
        if not self.c["diag"] or (self.c["diag"] == 2 and idx not in (0, 17, None)):
            return
        e = self.e
        if self.pending is not None:
            e(f"v_writelane_b32 {v(vSTAMP)}, {s(sSTAMP)}, {self.pending}")
        self.pending = idx
        if idx is not None:
            e(f"{'s_memtime' if idx in (22, 23) else 's_memrealtime'} {s(sSTAMP, 2)}")

    def flag_store(self, soff):
        e = self.e
        with e.atomic():
            e("s_mov_b64 exec, 1")
            e(f"buffer_store_dword {v(vNONCE)}, {v(vZERO)}, {s(sWS, 4)}, {s(soff)} offen sc1", tag="flag")
            e("s_mov_b64 exec, -1")

    def poll_blocking(self, loads):
        e = self.e
        top, done = self.lab("poll"), self.lab("polled")
        with e.atomic():
            e(f"s_mov_b32 {s(sCNT)}, {self.c['spin']}")
            e.label(top)
            for d, a, so in loads:
                e(f"buffer_load_dword {v(d)}, {v(a)}, {s(sWS, 4)}, {so} offen sc1")
            e.wait_all(lg=False)
            self.poll_test([d for d, _, _ in loads])
            e(f"s_cbranch_vccz {done}")
            if self.c["sleep"]:
                e(f"s_sleep {self.c['sleep']}")
            e(f"s_sub_u32 {s(sCNT)}, {s(sCNT)}, 1")
            e(f"s_cbranch_scc0 {top}")
            e.label(done)

    def poll_check(self, loads, before_spin=None):
        e = self.e
        fast = self.lab("fast")
        with e.atomic():
            self.poll_test([d for d, _, _ in loads])
            e(f"s_cbranch_vccz {fast}")
            st = e.state()
            if before_spin:
                before_spin()
            self.poll_blocking(loads)
            e.restore(st)
            e.label(fast)

    def poll_test(self, regs):
        e = self.e
        if len(regs) == 1:
            e(f"v_cmp_ne_u32 vcc, {v(regs[0])}, {v(vNONCE)}")
            return
        for r in regs:
            e(f"v_xor_b32 {v(r)}, {v(r)}, {v(vNONCE)}")
        for r in regs[1:]:
            e(f"v_or_b32 {v(regs[0])}, {v(regs[0])}, {v(r)}")
        e(f"v_cmp_ne_u32 vcc, 0, {v(regs[0])}")

    def dma_items(self, st, p, slot, gap, cold=False):
        e = self.e
        st.slot[p] = slot
        first_touch = cold or (p < 4 if st is self.A else self.c["ntb"] or p < 2 * self.c["rotw2"])
        nt = " nt" if self.c["nt"] == 2 or (self.c["nt"] and first_touch) else ""
        if self.c["skipw2"] and st is self.B and p >= self.c["skipw2"]:
            return []

        def first():
            e.wait_lg(("tr", slot))
            e(f"s_add_u32 m0, {s(sLDS)}, {slot * 4096}")
            if p % 2:
                e(f"s_add_u32 {s(st.off)}, {s(st.off)}, {s(st.g + 3)}")
            else:
                e(f"s_mul_i32 {s(st.off)}, {s(st.g)}, {s(st.g + 2)}")
            load(0)
            if p % 2 == 0:
                e(f"s_add_u32 {s(st.g)}, {s(st.g)}, 1")
                e(f"s_cmp_eq_u32 {s(st.g)}, {s(st.g + 1)}")
                e(f"s_cselect_b32 {s(st.g)}, 0, {s(st.g)}")

        def load(j):
            e(f"buffer_load_dwordx4 {v(st.va + j)}, {s(st.srd, 4)}, {s(st.off)} offen offset:{1024 * j}{nt} lds",
              tag=("w", st.name, p))

        return [(gap, first)] + [(gap, (lambda j=j: load(j))) for j in (1, 2, 3)]

    def tr_items(self, st, step, gap=1):
        e = self.e
        slot = st.slot[step // 2]

        def rd(pt, a):
            e.wait_vm(("w", st.name, step // 2))
            e(f"ds_read_b64_tr_b16 {a_(8 * step + 4 * pt + 2 * a, 2)}, {v(st.tr + pt)}"
              f" offset:{slot * 4096 + (step % 2) * 2048 + a * 512}", tag=("tr", slot))

        return [(gap, (lambda pt=pt, a=a: rd(pt, a))) for pt in range(2) for a in range(2)]

    def trp(self, st, p, gap=1):
        return self.tr_items(st, 2 * p, gap) + self.tr_items(st, 2 * p + 1, gap)

    def w_setup(self, st, which):
        e = self.e
        i, sw, t = vT + 2, vT + 3, vT + 4
        e(f"v_lshrrev_b32 {v(i)}, 3, {v(vLANE)}")
        e(f"v_and_b32 {v(sw)}, 7, {v(vLANE)}")
        e(f"v_lshrrev_b32 {v(t)}, 2, {v(vLANE)}")
        e(f"v_and_b32 {v(t)}, 4, {v(t)}")
        e(f"v_xor_b32 {v(sw)}, {v(sw)}, {v(t)}")
        if which == 1:
            e(f"s_mul_i32 {s(sT0)}, {s(sW)}, {512 * 3584}")
            e(f"s_lshl_b32 {s(sT2)}, {s(sF)}, 7")
            e(f"v_mul_u32_u24 {v(t)}, {64 * 3584}, {v(i)}")
            e(f"s_and_b32 {s(st.g)}, {s(sROT)}, 7")
            n, step, half = 8, 7168, 3584
        else:
            e(f"s_mul_i32 {s(sT0)}, {s(sW)}, {448 * 4096}")
            e(f"s_lshl_b32 {s(sT2)}, {s(sT)}, 7")
            e(f"v_and_b32 {v(t)}, 4, {v(i)}")
            e(f"v_add_lshl_u32 {v(t)}, {v(t)}, {v(i)}, 12")
            self.mod7(st.g)
            n, step, half = 7, 65536, 16384
        e(f"s_add_u32 {s(sT0)}, {s(sT0)}, {s(sT2)}")
        e(f"v_lshl_add_u32 {v(t)}, {v(sw)}, 4, {v(t)}")
        e(f"v_add_u32 {v(st.va)}, {s(sT0)}, {v(t)}")
        e(f"s_mov_b32 {s(st.g + 1)}, {n}")
        e(f"s_mov_b32 {s(st.g + 2)}, {4 * step}")
        e(f"s_mov_b32 {s(st.g + 3)}, {2 * step}")
        for j, off in ((1, half), (2, step), (3, step + half)):
            e(f"v_add_u32 {v(st.va + j)}, {off - 1024 * j}, {v(st.va)}")

    def mod7(self, dst):
        e = self.e
        e(f"s_mul_i32 {s(dst)}, {s(sROT2)}, 37")
        e(f"s_lshr_b32 {s(dst)}, {s(dst)}, 8")
        e(f"s_mul_i32 {s(dst)}, {s(dst)}, 7")
        e(f"s_sub_u32 {s(dst)}, {s(sROT2)}, {s(dst)}")

    def tr_setup(self, st, mask):
        e = self.e
        t = vT + 2
        e(f"v_bfe_u32 {v(t)}, {v(vLANE)}, 2, 2")
        e(f"v_lshrrev_b32 {v(t + 1)}, 5, {v(vLANE)}")
        e(f"v_lshlrev_b32 {v(t + 1)}, 10, {v(t + 1)}")
        e(f"v_lshl_add_u32 {v(t + 1)}, {v(t)}, 7, {v(t + 1)}")
        e(f"v_and_b32 {v(t + 2)}, 3, {v(vLANE)}")
        e(f"v_lshlrev_b32 {v(t + 2)}, 3, {v(t + 2)}")
        e(f"v_and_b32 {v(t + 3)}, 24, {v(vLANE)}")
        e(f"v_lshlrev_b32 {v(t)}, 1, {v(t + 3)}")
        e(f"v_and_b32 {v(t)}, 32, {v(t)}")
        e(f"v_lshlrev_b32 {v(t + 3)}, 3, {v(t + 3)}")
        e(f"v_and_b32 {v(t + 3)}, 64, {v(t + 3)}")
        e(f"v_or3_b32 {v(t + 2)}, {v(t + 2)}, {v(t)}, {v(t + 3)}")
        e(f"v_xor_b32 {v(t + 2)}, {s(mask)}, {v(t + 2)}")
        e(f"v_add3_u32 {v(st.tr)}, {v(t + 1)}, {v(t + 2)}, {s(sLDS)}")
        e(f"v_xor_b32 {v(st.tr + 1)}, 64, {v(st.tr)}")

    def prologue(self):
        e, c = self.e, self.c
        nt = " nt" if c["nt"] else ""
        e("s_cmp_ge_u32 s2, 256")
        e("s_cbranch_scc1 L_end")
        e(f"s_load_dwordx2 {s(sX, 2)}, s[0:1], 0")
        if c["codepf"]:
            e(f"s_getpc_b64 {s(sCODE, 2)}")
            e.label("L_pc")
            e(f"s_mov_b32 {s(sCODE + 2)}, L_code_end-L_pc")
            e(f"s_mov_b32 {s(sCODE + 3)}, 0x20000")
            e(f"s_lshr_b32 {s(sT0)}, s2, 3")
            e(f"s_lshl_b32 {s(sT0)}, {s(sT0)}, 10")
            e(f"v_lshrrev_b32 {v(vT)}, 5, v0")
            e(f"v_lshlrev_b32 {v(vT)}, 7, {v(vT)}")
            e(f"buffer_load_dword {v(vPA)}, {v(vT)}, {s(sCODE, 4)}, {s(sT0)} offen")
        for reg, off in ((sWS, 96), (sWA, 48), (sWB, 64), (sB1, 56), (sB2, 72), (sOUT, 80)):
            e(f"s_load_dwordx2 {s(reg, 2)}, s[0:1], {off}")
        if c["diag"]:
            e(f"v_mov_b32 {v(vSTAMP)}, 0")
        self.stamp(0)
        self.stamp(22)
        e(f"v_lshrrev_b32 {v(vT)}, 6, v0")
        e(f"v_and_b32 {v(vLANE)}, 63, v0")
        e(f"v_readfirstlane_b32 {s(sW)}, {v(vT)}")
        e(f"v_lshlrev_b32 {v(vT + 1)}, 4, {v(vLANE)}")
        e(f"v_lshl_add_u32 {v(vT + 1)}, {v(vT)}, 17, {v(vT + 1)}")
        e(f"s_lshr_b32 {s(sT0)}, s2, 6")
        e(f"s_lshl_b32 {s(sT0)}, {s(sT0)}, 19")
        e(f"s_and_b32 {s(sT1)}, s2, 63")
        e(f"s_lshl_b32 {s(sT1)}, {s(sT1)}, 10")
        e(f"s_add_u32 {s(sT0)}, {s(sT0)}, {s(sT1)}")
        e(f"s_add_u32 {s(sT1)}, {s(sT0)}, 65536")
        e(f"s_mov_b32 {s(sX + 2)}, 2097152")
        e(f"s_mov_b32 {s(sX + 3)}, 0x20000")
        e.wait_all(vm=False)
        e(f"buffer_load_dwordx4 v[64:67], {v(vT + 1)}, {s(sX, 4)}, {s(sT0)} offen{nt}")
        e(f"buffer_load_dwordx4 v[68:71], {v(vT + 1)}, {s(sX, 4)}, {s(sT1)} offen{nt}")
        e(f"s_load_dword {s(sNONCE)}, {s(sWS, 2)}, 0")
        for reg, n in ((sWA, 7340032), (sWB, 7340032), (sWS, WS_BYTES), (sOUT, 2097152), (sB1, 3584), (sB2, 4096)):
            e(f"s_mov_b32 {s(reg + 2)}, {n}")
            e(f"s_mov_b32 {s(reg + 3)}, 0x20000")
        e(f"s_lshr_b32 {s(sD2)}, s2, 5")
        e(f"s_bfe_u32 {s(sT1)}, s2, 0x20003")
        e(f"s_and_b32 {s(sT0)}, s2, 7")
        e(f"s_lshl2_add_u32 {s(sT)}, {s(sT0)}, {s(sT1)}")
        e(f"s_mul_i32 {s(sROT2)}, {s(sT1)}, {2 * c['rotc']}")
        e(f"s_min_u32 {s(sT2)}, {s(sD2)}, 6")
        e(f"s_mul_i32 {s(sT2)}, {s(sT2)}, {c['rotw2']}")
        e(f"s_add_u32 {s(sROT2)}, {s(sROT2)}, {s(sT2)}")
        e(f"s_lshr_b32 {s(sT0)}, {s(sT0)}, 1")
        e(f"s_mul_i32 {s(sF)}, {s(sT0)}, 7")
        e(f"s_and_b32 {s(sT0)}, s2, 1")
        e(f"s_lshl_b32 {s(sT0)}, {s(sT0)}, 2")
        e(f"s_lshr_b32 {s(sT2)}, s2, 6")
        e(f"s_add_u32 {s(sCNT)}, {s(sT0)}, {s(sT2)}")
        e(f"s_add_u32 {s(sT0)}, {s(sT0)}, {s(sT1)}")
        e(f"s_lshl_b32 {s(sT1)}, {s(sT1)}, 1")
        e(f"s_bfe_u32 {s(sD1)}, s2, 0x30003")
        e(f"s_cmp_eq_u32 {s(sT2)}, 3")
        e(f"s_cselect_b32 {s(sCNT)}, 3, {s(sCNT)}")
        e(f"s_cselect_b32 {s(sT1)}, {s(sT1)}, {s(sD1)}")
        e(f"s_cselect_b32 {s(sD1)}, {s(sT0)}, {s(sD1)}")
        e(f"s_add_u32 {s(sF)}, {s(sF)}, {s(sCNT)}")
        e(f"s_mul_i32 {s(sT1)}, {s(sT1)}, {c['rotw']}")
        e(f"s_mul_i32 {s(sT2)}, {s(sT2)}, {2 * c['rotc']}")
        e(f"s_add_u32 {s(sROT)}, {s(sT1)}, {s(sT2)}")
        e(f"s_lshl_b32 {s(sLDS)}, {s(sW)}, 15")
        e(f"s_lshl_b32 {s(sT3)}, {s(sW)}, 5")
        e(f"s_cmp_eq_u32 {s(sD2)}, 7")
        e("s_cbranch_scc1 L_first2")
        st0 = e.state()
        self.w_setup(self.A, 1)
        e("s_branch L_first")
        e.restore(st0)
        e.label("L_first2")
        e(f"s_mov_b64 {s(sWA, 2)}, {s(sWB, 2)}")
        e(f"s_and_b32 {s(sT3)}, {s(sT3)}, 64")
        self.w_setup(self.A, 2)
        e.label("L_first")
        for p in range(c["lead"]):
            e.bg += self.dma_items(self.A, p, p, c["gap_a"])
        e.run_bg(1)
        self.early_loads()
        self.tr_setup(self.A, sT3)
        e(f"v_mov_b32 {v(vZERO)}, 0")

    def x_tile(self):
        nt = " nt" if self.c["nt"] else ""
        for mt in range(2):
            self.e(f"buffer_load_dwordx4 {v(vE + 12 * mt, 4)}, {v(vXO)}, {s(sX, 4)}, 0 offen offset:{64 * mt}{nt}")

    def early_loads(self):
        e = self.e
        t, d0 = vT + 1, vT + 2
        e(f"s_lshr_b32 {s(sT0)}, {s(sW)}, 1")
        e(f"s_lshl1_add_u32 {s(sT0)}, {s(sT)}, {s(sT0)}")
        e(f"s_lshl_b32 {s(sT0)}, {s(sT0)}, 6")
        e(f"v_and_b32 {v(t)}, 31, {v(vLANE)}")
        e(f"v_lshl_add_u32 {v(t)}, {v(t)}, 1, {s(sT0)}")
        e(f"s_and_b32 {s(sT0)}, {s(sW)}, 1")
        e(f"s_lshl2_add_u32 {s(sT0)}, {s(sD2)}, {s(sT0)}")
        e(f"s_lshl_b32 {s(sT0)}, {s(sT0)}, 5")
        e(f"v_lshrrev_b32 {v(d0)}, 5, {v(vLANE)}")
        e(f"buffer_load_ushort {v(vB2)}, {v(t)}, {s(sB2, 4)}, 0 offen")
        e(f"v_lshl_add_u32 {v(vXO)}, {v(d0)}, 4, {s(sT0)}")
        e(f"v_lshl_add_u32 {v(vXO)}, {v(t)}, 9, {v(vXO)}")
        e(f"s_lshl2_add_u32 {s(sT0)}, {s(sF)}, {s(sW)}")
        e(f"s_lshl_b32 {s(sT0)}, {s(sT0)}, 5")
        e(f"v_lshlrev_b32 {v(d0)}, 3, {v(d0)}")
        e(f"v_lshrrev_b32 {v(t)}, 3, {v(vLANE)}")
        e(f"v_xor_b32 {v(t + 2)}, {v(t)}, {v(vLANE)}")
        e(f"v_and_b32 {v(t + 2)}, 7, {v(t + 2)}")
        e(f"v_lshlrev_b32 {v(t + 2)}, 4, {v(t + 2)}")
        e(f"v_lshl_add_u32 {v(t + 2)}, {v(t)}, 10, {v(t + 2)}")
        e(f"s_lshl2_add_u32 {s(sT1)}, {s(sT)}, {s(sW)}")
        e(f"s_lshl_b32 {s(sT1)}, {s(sT1)}, 7")
        e(f"s_add_u32 {s(sT1)}, {s(sT1)}, {s(sD2)}")
        e(f"s_lshl_b32 {s(sT1)}, {s(sT1)}, 7")
        e(f"v_add_u32 {v(t + 3)}, {8192 - 1024}, {v(t + 2)}")
        nt = " nt" if self.c["nt"] else ""
        with e.atomic():
            e(f"s_mov_b32 {s(sT2)}, m0")
            e(f"s_add_u32 m0, {s(sLDS)}, {7 * 4096}")
            e(f"buffer_load_dwordx4 {v(t + 2)}, {s(sX, 4)}, {s(sT1)} offen{nt} lds", tag="xt")
            e(f"buffer_load_dwordx4 {v(t + 3)}, {s(sX, 4)}, {s(sT1)} offen offset:1024{nt} lds", tag="xt")
            e(f"s_mov_b32 m0, {s(sT2)}")
        e(f"buffer_load_dwordx2 {v(vB1 + 4, 2)}, {v(d0)}, {s(sB1, 4)}, {s(sT0)} offen")
        e(f"buffer_load_dwordx2 {v(vB1 + 6, 2)}, {v(d0)}, {s(sB1, 4)}, {s(sT0)} offen offset:16")

    def hid_consts(self):
        e = self.e
        B1c, B1s, TWC, TWS, A2r, A2i, Asr, Asi, ZA = 128, 132, 136, 140, 144, 148, 152, 156, 160
        n, q, fn, fq4, base, ph = vT + 2, vT + 3, vT + 4, vT + 5, vT + 6, vT + 7
        th, c0, s0 = 96, 104, 112
        e(f"v_and_b32 {v(n)}, 15, {v(vLANE)}")
        e(f"v_lshrrev_b32 {v(q)}, 4, {v(vLANE)}")
        e(f"v_cvt_f32_ubyte0 {v(fn)}, {v(n)}")
        e(f"v_cvt_f32_ubyte0 {v(fq4)}, {v(q)}")
        e(f"v_mul_f32 {v(fq4)}, 4.0, {v(fq4)}")
        e(f"v_cmp_eq_u32 {s(sM0, 2)}, 0, {v(n)}")
        e(f"v_cmp_lt_u32 {s(sM1, 2)}, 7, {v(n)}")

        def angles(freq, consts, dst, phase=None):
            e(f"v_mul_f32 {v(base)}, {v(fq4)}, {v(freq)}")
            if phase is not None:
                e(f"v_add_f32 {v(base)}, {v(base)}, {v(phase)}")
            for i, k in enumerate(consts):
                e(f"v_fmamk_f32 {v(dst + i)}, {v(freq)}, {f32(k)}, {v(base)}")

        fr = vT + 8
        d1 = [0, 1, 2, 3, 16, 17, 18, 19]
        e(f"v_mul_f32 {v(fr)}, {f32(1 / 32)}, {v(fn)}")
        angles(fr, d1, th)
        for i in range(8):
            e(f"v_cos_f32 {v(c0 + i)}, {v(th + i)}")
        for i in range(4):
            e(f"v_cvt_pk_bf16_f32 {v(B1c + i)}, {v(c0 + 2 * i)}, {v(c0 + 2 * i + 1)}")
        e(f"v_cndmask_b32 {v(fr)}, {v(fr)}, 0.5, {s(sM0, 2)}")
        e(f"v_mov_b32 {v(ph)}, {f32(0.25)}")
        e(f"v_cndmask_b32 {v(ph)}, {v(ph)}, 0, {s(sM0, 2)}")
        angles(fr, d1, th, ph)
        for i in range(8):
            e(f"v_cos_f32 {v(c0 + i)}, {v(th + i)}")
        for i in range(4):
            e(f"v_cvt_pk_bf16_f32 {v(B1s + i)}, {v(c0 + 2 * i)}, {v(c0 + 2 * i + 1)}")
        e(f"v_mul_f32 {v(fr)}, {f32(1 / 512)}, {v(fn)}")
        angles(fr, range(4), th)
        for i in range(4):
            e(f"v_cos_f32 {v(TWC + i)}, {v(th + i)}")
            e(f"v_sin_f32 {v(TWS + i)}, {v(th + i)}")
        e(f"v_mul_f32 {v(fr)}, {f32(1 / 16)}, {v(fn)}")
        angles(fr, range(4), th)
        for i in range(4):
            e(f"v_cos_f32 {v(c0 + i)}, {v(th + i)}")
            e(f"v_sin_f32 {v(s0 + i)}, {v(th + i)}")
        e(f"v_mov_b32 {v(ph)}, 0x80008000")
        e(f"v_cndmask_b32 {v(ph)}, 0, {v(ph)}, {s(sM1, 2)}")
        for i in range(2):
            e(f"v_cvt_pk_bf16_f32 {v(A2r + i)}, {v(c0 + 2 * i)}, {v(c0 + 2 * i + 1)}")
            e(f"v_cvt_pk_bf16_f32 {v(A2r + 2 + i)}, {v(s0 + 2 * i)}, {v(s0 + 2 * i + 1)}")
            e(f"v_cvt_pk_bf16_f32 {v(A2i + i)}, -{v(s0 + 2 * i)}, -{v(s0 + 2 * i + 1)}")
            e(f"v_xor_b32 {v(A2i + i)}, {v(A2i + i)}, {v(ph)}")
            e(f"v_xor_b32 {v(A2i + 2 + i)}, {v(A2r + i)}, {v(ph)}")
        e(f"v_add_f32 {v(th)}, {f32(1 / 16)}, {v(fr)}")
        e(f"v_add_f32 {v(th + 1)}, {f32(-15 / 32)}, {v(fr)}")
        e(f"v_cndmask_b32 {v(fr)}, {v(th)}, {v(th + 1)}, {s(sM1, 2)}")
        angles(fr, range(4), th)
        for i in range(4):
            e(f"v_cos_f32 {v(c0 + i)}, {v(th + i)}")
            e(f"v_sin_f32 {v(s0 + i)}, {v(th + i)}")
        for i in range(2):
            e(f"v_cvt_pk_bf16_f32 {v(th + i)}, {v(c0 + 2 * i)}, {v(c0 + 2 * i + 1)}")
            e(f"v_cvt_pk_bf16_f32 {v(th + 2 + i)}, -{v(s0 + 2 * i)}, -{v(s0 + 2 * i + 1)}")
        for i in range(2):
            e(f"v_cndmask_b32 {v(Asr + i)}, {v(th + i)}, 0, {s(sM1, 2)}")
            e(f"v_cndmask_b32 {v(Asr + 2 + i)}, 0, {v(th + i)}, {s(sM1, 2)}")
            e(f"v_cndmask_b32 {v(Asi + i)}, {v(th + 2 + i)}, 0, {s(sM1, 2)}")
            e(f"v_cndmask_b32 {v(Asi + 2 + i)}, 0, {v(th + 2 + i)}, {s(sM1, 2)}")
        e(f"v_cmp_lt_u32 {s(sM1, 2)}, 1, {v(q)}")
        e(f"s_lshl_b32 {s(sT0)}, {s(sW)}, 2")
        e(f"s_add_u32 {s(sT0)}, {s(sT0)}, {ZST}")
        for j in range(4):
            m32, t1, t2 = th, th + 1, th + 2
            e(f"v_lshlrev_b32 {v(m32)}, 7, {v(q)}")
            e(f"v_add_u32 {v(m32)}, {32 * j}, {v(m32)}")
            e(f"v_add_u32 {v(t1)}, {v(m32)}, {v(n)}")
            e(f"v_sub_u32 {v(t2)}, 512, {v(t1)}")
            e(f"v_cndmask_b32 {v(t1)}, {v(t1)}, {v(t2)}, {s(sM1, 2)}")
            e(f"v_add_u32 {v(t2)}, 32, {v(m32)}")
            e(f"v_and_b32 {v(t2)}, 255, {v(t2)}")
            e(f"v_subrev_u32 {v(m32)}, 240, {v(m32)}")
            e(f"v_cndmask_b32 {v(t2)}, {v(t2)}, {v(m32)}, {s(sM1, 2)}")
            e(f"v_cndmask_b32 {v(t1)}, {v(t1)}, {v(t2)}, {s(sM0, 2)}")
            e(f"v_lshl_add_u32 {v(ZA + j)}, {v(t1)}, 5, {s(sT0)}")

    def ln_stats(self, a, b, pivot):
        e = self.e
        t = vT
        ta, tb = 96, 104
        if pivot:
            e(f"v_readlane_b32 {s(sP)}, {v(a)}, 0")
            e(f"v_readlane_b32 {s(sP + 1)}, {v(b)}, 0")
            for k in range(4):
                e(f"v_pk_add_f32 {v(ta + 2 * k, 2)}, {v(a + 2 * k, 2)}, {s(sP, 2)} op_sel_hi:[1,0] neg_lo:[0,1] neg_hi:[0,1]")
                e(f"v_pk_add_f32 {v(tb + 2 * k, 2)}, {v(b + 2 * k, 2)}, {s(sP, 2)} op_sel:[0,1] op_sel_hi:[1,1] neg_lo:[0,1] neg_hi:[0,1]")
            a, b = ta, tb
        sa, qa, sb, qb = t, t + 4, t + 8, t + 12
        for (x, sm, sq) in ((a, sa, qa), (b, sb, qb)):
            e(f"v_pk_add_f32 {v(sm, 2)}, {v(x, 2)}, {v(x + 2, 2)}")
            e(f"v_pk_mul_f32 {v(sq, 2)}, {v(x, 2)}, {v(x, 2)}")
            e(f"v_pk_add_f32 {v(sm + 2, 2)}, {v(x + 4, 2)}, {v(x + 6, 2)}")
            e(f"v_pk_mul_f32 {v(sq + 2, 2)}, {v(x + 4, 2)}, {v(x + 4, 2)}")
        for (x, sm, sq) in ((a, sa, qa), (b, sb, qb)):
            e(f"v_pk_fma_f32 {v(sq, 2)}, {v(x + 2, 2)}, {v(x + 2, 2)}, {v(sq, 2)}")
            e(f"v_pk_fma_f32 {v(sq + 2, 2)}, {v(x + 6, 2)}, {v(x + 6, 2)}, {v(sq + 2, 2)}")
            e(f"v_pk_add_f32 {v(sm, 2)}, {v(sm, 2)}, {v(sm + 2, 2)}")
        for (sm, sq) in ((sa, qa), (sb, qb)):
            e(f"v_pk_add_f32 {v(sq, 2)}, {v(sq, 2)}, {v(sq + 2, 2)}")
            e(f"v_add_f32 {v(sm)}, {v(sm)}, {v(sm + 1)}")
        e(f"v_add_f32 {v(qa)}, {v(qa)}, {v(qa + 1)}")
        e(f"v_add_f32 {v(qb)}, {v(qb)}, {v(qb + 1)}")
        e(f"v_permlane32_swap_b32 {v(sa)}, {v(sb)}")
        e(f"v_permlane32_swap_b32 {v(qa)}, {v(qb)}")
        e(f"v_add_f32 {v(sa)}, {v(sa)}, {v(sb)}")
        e(f"v_add_f32 {v(qa)}, {v(qa)}, {v(qb)}")
        e(f"v_permlane16_swap_b32 {v(sa)}, {v(qa)}")
        e(f"v_add_f32 {v(sa)}, {v(sa)}, {v(qa)}")
        for m in ("quad_perm:[1,0,3,2]", "quad_perm:[2,3,0,1]", "row_half_mirror", "row_mirror"):
            e(f"v_add_f32_dpp {v(sa)}, {v(sa)}, {v(sa)} {m} row_mask:0xf bank_mask:0xf")
        e(f"v_mov_b32 {v(qa)}, {v(sa)}")
        e(f"v_permlane16_swap_b32 {v(sa)}, {v(qa)}")
        e(f"v_mul_f32 {v(sa)}, {f32(1 / 512)}, {v(sa)}")
        e(f"v_mul_f32 {v(qa)}, {f32(1 / 512)}, {v(qa)}")
        e(f"v_fma_f32 {v(qa)}, -{v(sa)}, {v(sa)}, {v(qa)}")
        e(f"v_max_f32 {v(qa)}, 0, {v(qa)}")
        if pivot:
            e(f"v_mov_b32 {v(sb)}, {s(sP)}")
            e(f"v_mov_b32 {v(qb)}, {s(sP + 1)}")
            e(f"v_permlane32_swap_b32 {v(sb)}, {v(qb)}")
            e(f"v_add_f32 {v(sa)}, {v(sa)}, {v(sb)}")
        e(f"v_cvt_pk_bf16_f32 {v(qa)}, 0, {v(qa)}")
        e(f"v_cvt_pk_bf16_f32 {v(sa)}, 0, {v(sa)}")
        e(f"v_add_f32 {v(qa)}, {f32(1e-5)}, {v(qa)}")
        e(f"v_cvt_pk_bf16_f32 {v(qa)}, 0, {v(qa)}")
        e(f"v_sqrt_f32 {v(qa)}, {v(qa)}")
        e(f"v_readlane_b32 {s(sP)}, {v(sa)}, 0")
        e(f"v_cvt_pk_bf16_f32 {v(qa)}, 0, {v(qa)}")
        e(f"v_rcp_f32 {v(qa)}, {v(qa)}")
        e(f"v_readlane_b32 {s(sP + 1)}, {v(sa)}, 32")
        e(f"v_readlane_b32 {s(sQ)}, {v(qa)}, 0")
        e(f"v_readlane_b32 {s(sQ + 1)}, {v(qa)}, 32")

    def ln_apply(self, a, b, pa, pb):
        e = self.e
        sel = ("op_sel_hi:[1,0]", "op_sel:[0,1] op_sel_hi:[1,1]")
        for k in range(4):
            for r, x in enumerate((a, b)):
                e(f"v_pk_add_f32 {v(x + 2 * k, 2)}, {v(x + 2 * k, 2)}, {s(sP, 2)} {sel[r]} neg_lo:[0,1] neg_hi:[0,1]")
        for k in range(8):
            for x in (a, b):
                e(f"v_cvt_pk_bf16_f32 {v(x + k)}, 0, {v(x + k)}")
        for k in range(4):
            for r, x in enumerate((a, b)):
                e(f"v_pk_mul_f32 {v(x + 2 * k, 2)}, {v(x + 2 * k, 2)}, {s(sQ, 2)} {sel[r]}")
        for k in range(4):
            for x, p in ((a, pa), (b, pb)):
                e(f"v_cvt_pk_bf16_f32 {v(p + k)}, {v(x + 2 * k)}, {v(x + 2 * k + 1)}")

    def unpack(self, p, x, n=4):
        e = self.e
        for k in range(n):
            e(f"v_lshlrev_b32 {v(x + 2 * k)}, 16, {v(p + k)}")
            e(f"v_and_b32 {v(x + 2 * k + 1)}, 0xffff0000, {v(p + k)}")

    def phase1(self):
        e, c = self.e, self.c
        a, b, pa, pb = 72, 80, 64, 68
        wr, hr, hs = vT + 16, vT + 17, vT + 18
        e(f"s_mul_i32 {s(sT0)}, {s(sW)}, {2 * ROWB}")
        e(f"s_add_u32 {s(sT0)}, {s(sT0)}, {XN}")
        e(f"v_lshl_add_u32 {v(wr)}, {v(vLANE)}, 4, {s(sT0)}")
        e(f"v_bfe_u32 {v(vT)}, {v(vLANE)}, 2, 2")
        e(f"v_mul_u32_u24 {v(vT)}, {ROWB}, {v(vT)}")
        e(f"v_lshrrev_b32 {v(vT + 1)}, 4, {v(vLANE)}")
        e(f"v_lshl_add_u32 {v(vT)}, {v(vT + 1)}, 5, {v(vT)}")
        e(f"v_and_b32 {v(vT + 1)}, 3, {v(vLANE)}")
        e(f"v_lshl_add_u32 {v(vT)}, {v(vT + 1)}, 3, {v(vT)}")
        e(f"s_lshl_b32 {s(sT0)}, {s(sW)}, 8")
        e(f"s_add_u32 {s(sT0)}, {s(sT0)}, {HH}")
        e(f"v_add_u32 {v(hr)}, {s(sT0)}, {v(vT)}")
        e(f"v_lshrrev_b32 {v(vT)}, 5, {v(vLANE)}")
        e(f"v_and_b32 {v(vT + 1)}, 31, {v(vLANE)}")
        e(f"v_lshlrev_b32 {v(vT + 1)}, 4, {v(vT + 1)}")
        e(f"v_lshl_add_u32 {v(hs)}, {v(vT)}, 17, {v(vT + 1)}")
        e(f"s_lshl_b32 {s(sT0)}, {s(sW)}, 19")
        e(f"s_lshl_b32 {s(sT1)}, s2, 9")
        e(f"s_add_u32 {s(sT1)}, {s(sT0)}, {s(sT1)}")
        e(f"s_add_u32 {s(sHO)}, {s(sT1)}, {H_}")
        e(f"s_add_u32 {s(sHO + 1)}, {s(sT1)}, {H_ + 262144}")
        e(f"s_lshl_b32 {s(sT1)}, s2, 6")
        e(f"s_add_u32 {s(sT1)}, {s(sT0)}, {s(sT1)}")
        e(f"s_add_u32 {s(sZO)}, {s(sT1)}, {Z_}")
        e(f"s_add_u32 {s(sZO + 1)}, {s(sT1)}, {Z_ + 262144}")
        e(f"s_lshl_b32 {s(sT0)}, {s(sW)}, 8")
        e(f"s_add_u32 {s(sT0)}, {s(sT0)}, s2")
        e(f"s_lshl_b32 {s(sT0)}, {s(sT0)}, 7")
        e(f"s_add_u32 {s(sFLH)}, {s(sT0)}, {FH}")
        e(f"s_add_u32 {s(sFLZ)}, {s(sT0)}, {FZ}")
        e(f"s_lshl_b32 {s(sT0)}, {s(sW)}, 11")
        e(f"s_add_u32 {s(sT0)}, {s(sT0)}, {ZST}")
        e(f"v_lshl_add_u32 {v(vT + 19)}, {v(vLANE)}, 4, {s(sT0)}")
        e(f"v_lshrrev_b32 {v(vT)}, 2, {v(vLANE)}")
        e(f"v_and_b32 {v(vT + 1)}, 3, {v(vLANE)}")
        e(f"v_lshlrev_b32 {v(vT + 1)}, 4, {v(vT + 1)}")
        e(f"v_lshl_add_u32 {v(vT + 20)}, {v(vT)}, 14, {v(vT + 1)}")
        e(f"v_lshlrev_b32 {v(vT)}, 3, {v(vLANE)}")
        e(f"v_sub_u32 {v(vT + 21)}, {v(wr)}, {v(vT)}")
        e.wait_all(vm=False)
        e(f"s_mul_i32 {s(sNONCE)}, {s(sNONCE)}, 0x9e3779b1")
        e(f"s_add_u32 {s(sNONCE)}, {s(sNONCE)}, 0x7f4a7c15")
        e(f"v_mov_b32 {v(vNONCE)}, {s(sNONCE)}")
        self.stamp(18)
        e.hold += 0 if c["ln_bg"] else 1
        self.unpack(pa, a)
        self.stamp(1)
        self.unpack(pb, b)
        self.ln_stats(a, b, True)
        self.ln_apply(a, b, pa, pb)
        e(f"ds_write_b128 {v(wr)}, {v(pa, 4)}")
        e(f"ds_write_b128 {v(wr)}, {v(pb, 4)} offset:{ROWB}")
        self.unpack(pa, a)
        self.unpack(pb, b)
        self.ln_stats(a, b, False)
        self.ln_apply(a, b, 88, 92)
        e(f"ds_write_b128 {v(wr)}, {v(88, 4)} offset:{HH - XN}")
        e(f"ds_write_b128 {v(wr)}, {v(92, 4)} offset:{HH - XN + ROWB}")
        e.wait_all(vm=False)
        e("s_barrier")
        for h in range(2):
            for r in range(2):
                e(f"ds_read_b64_tr_b16 {v(64 + 4 * h + 2 * r, 2)}, {v(hr)} offset:{h * 128 + r * 4 * ROWB}")
        for r in range(2):
            for h in range(2):
                e(f"ds_read_b64_tr_b16 {v(72 + 4 * r + 2 * h, 2)}, {v(vT + 21)} offset:{r * ROWB + h * 512}")
        e(f"buffer_store_dwordx4 v[64:67], {v(hs)}, {s(sWS, 4)}, {s(sHO)} offen sc1", tag="H")
        e(f"buffer_store_dwordx4 v[68:71], {v(hs)}, {s(sWS, 4)}, {s(sHO + 1)} offen sc1", tag="H")
        e.hold -= 0 if c["ln_bg"] else 1
        self.stamp(2)

    def hid_fft(self):
        e = self.e
        B1c, B1s, TWC, TWS, A2r, A2i, Asr, Asi, ZA = 128, 132, 136, 140, 144, 148, 152, 156, 160
        M = "v_mfma_f32_16x16x32_bf16"
        Tr, Ti, Ur, Ui, Bf, Zr, Zi, Sr, Si = 80, 88, 96, 104, 112, 164, 172, 180, 188
        for r in range(2):
            e(f"{M} {v(Tr + 4 * r, 4)}, {v(72 + 4 * r, 4)}, {v(B1c, 4)}, 0")
            e(f"{M} {v(Ti + 4 * r, 4)}, {v(72 + 4 * r, 4)}, {v(B1s, 4)}, 0")
        for r in range(2):
            for k in (0, 2):
                o = 4 * r + k
                e(f"v_pk_mul_f32 {v(Ur + o, 2)}, {v(Tr + o, 2)}, {v(TWC + k, 2)}")
                e(f"v_pk_mul_f32 {v(Ui + o, 2)}, {v(Ti + o, 2)}, {v(TWC + k, 2)}")
            for k in (0, 2):
                o = 4 * r + k
                e(f"v_pk_fma_f32 {v(Ur + o, 2)}, {v(Ti + o, 2)}, {v(TWS + k, 2)}, {v(Ur + o, 2)}")
                e(f"v_pk_fma_f32 {v(Ui + o, 2)}, {v(Tr + o, 2)}, {v(TWS + k, 2)}, {v(Ui + o, 2)} neg_lo:[1,0,0] neg_hi:[1,0,0]")
            for k in range(2):
                e(f"v_cvt_pk_bf16_f32 {v(Bf + 4 * r + k)}, {v(Ur + 4 * r + 2 * k)}, {v(Ur + 4 * r + 2 * k + 1)}")
                e(f"v_cvt_pk_bf16_f32 {v(Bf + 4 * r + 2 + k)}, {v(Ui + 4 * r + 2 * k)}, {v(Ui + 4 * r + 2 * k + 1)}")
        for r in range(2):
            for dst, A in ((Zr, A2r), (Sr, Asr), (Zi, A2i), (Si, Asi)):
                e(f"{M} {v(dst + 4 * r, 4)}, {v(A, 4)}, {v(Bf + 4 * r, 4)}, 0")
        for dst, alt in ((Zr, Sr), (Zi, Si)):
            for k in range(8):
                e(f"v_cndmask_b32 {v(dst + k)}, {v(dst + k)}, {v(alt + k)}, {s(sM0, 2)}")
        for part, z in enumerate((Zr, Zi)):
            for j in range(4):
                e(f"v_cvt_pk_bf16_f32 {v(Tr + 4 * part + j)}, {v(z + j)}, {v(z + 4 + j)}")
                e(f"ds_write_b32 {v(ZA + j)}, {v(Tr + 4 * part + j)} offset:{16 * part}")
        if self.c["fh_early"]:
            self.publish("H", sFLH)
        xa = 112
        e(f"v_bfe_u32 {v(xa)}, {v(vXO)}, 4, 3")
        e(f"v_xor_b32 {v(xa)}, {v(xa)}, {v(vLANE)}")
        e(f"v_and_b32 {v(xa)}, 7, {v(xa)}")
        e(f"v_bfe_u32 {v(xa + 1)}, {v(vXO)}, 14, 2")
        e(f"v_lshlrev_b32 {v(xa + 1)}, 15, {v(xa + 1)}")
        e(f"v_lshl_add_u32 {v(xa)}, {v(xa)}, 4, {v(xa + 1)}")
        e(f"v_and_b32 {v(xa + 1)}, 15, {v(vLANE)}")
        e(f"v_lshl_add_u32 {v(xa)}, {v(xa + 1)}, 7, {v(xa)}")
        e(f"v_xor_b32 {v(xa + 1)}, 64, {v(xa)}")
        e.wait_vm("xt")
        e.wait_all(vm=False)
        e("s_barrier")
        for mt in range(2):
            e(f"ds_read_b128 {v(vE + 12 * mt, 4)}, {v(xa + mt)} offset:{7 * 4096}")
        e(f"ds_read_b128 v[64:67], {v(vT + 19)}")
        e(f"ds_read_b128 v[68:71], {v(vT + 19)} offset:1024")
        e(f"buffer_store_dwordx4 v[64:67], {v(vT + 20)}, {s(sWS, 4)}, {s(sZO)} offen sc1", tag="Z")
        e(f"buffer_store_dwordx4 v[68:71], {v(vT + 20)}, {s(sWS, 4)}, {s(sZO + 1)} offen sc1", tag="Z")
        if not self.c["fh_early"]:
            self.publish("H", sFLH)
        self.stamp(3)

    def publish(self, tag, soff):
        self.e.wait_vm(tag)
        self.flag_store(soff)

    def gemm_addresses(self):
        e = self.e
        l16 = vT
        e(f"v_lshlrev_b32 {v(l16)}, 4, {v(vLANE)}")
        e(f"s_lshl_b32 {s(sT0)}, {s(sD1)}, 18")
        e(f"s_add_u32 {s(sT0)}, {s(sT0)}, {s(sLDS)}")
        e(f"s_add_u32 {s(sT0)}, {s(sT0)}, {H_}")
        e(f"v_add_u32 {v(vA1)}, {s(sT0)}, {v(l16)}")
        e(f"v_add_u32 {v(vA1 + 1)}, 131072, {v(vA1)}")
        e(f"s_mul_i32 {s(sT0)}, {s(sD1)}, 224")
        e(f"s_lshl2_add_u32 {s(sT1)}, {s(sF)}, {s(sW)}")
        e(f"s_add_u32 {s(sT0)}, {s(sT0)}, {s(sT1)}")
        e(f"s_lshl_b32 {s(sT0)}, {s(sT0)}, 10")
        e(f"s_add_u32 {s(sT0)}, {s(sT0)}, {U_}")
        e(f"v_add_u32 {v(vUST)}, {s(sT0)}, {v(l16)}")
        e(f"s_lshl3_add_u32 {s(sT0)}, {s(sD2)}, {s(sW)}")
        e(f"s_mul_i32 {s(sT0)}, {s(sT0)}, {28 * 1024}")
        e(f"s_add_u32 {s(sT0)}, {s(sT0)}, {U_}")
        e(f"s_and_b32 {s(sT1)}, {s(sW)}, 1")
        e(f"s_lshl_b32 {s(sT1)}, {s(sT1)}, 8")
        e(f"v_xor_b32 {v(vT + 1)}, {s(sT1)}, {v(l16)}")
        e(f"v_add_u32 {v(vA2)}, {s(sT0)}, {v(vT + 1)}")
        e(f"v_add_u32 {v(vA2 + 1)}, 114688, {v(vA2)}")
        for q in (1, 2, 3):
            e(f"s_xor_b32 {s(sT0)}, {s(sW)}, {q}")
            e(f"s_mul_i32 {s(sT0)}, {s(sT0)}, 6144")
            e(f"s_add_u32 {s(sT0)}, {s(sT0)}, {R_ + (q - 1) * 2048}")
            e(f"v_add_u32 {v(vRW + q - 1)}, {s(sT0)}, {v(l16)}")
        e(f"s_mul_i32 {s(sT0)}, {s(sW)}, 6144")
        e(f"s_add_u32 {s(sT0)}, {s(sT0)}, {R_}")
        e(f"v_add_u32 {v(vRR)}, {s(sT0)}, {v(l16)}")
        t, d0, tm, u = vT + 1, vT + 2, vT + 3, vT + 4
        e(f"v_lshrrev_b32 {v(t)}, 10, {v(vXO)}")
        e(f"v_bfe_u32 {v(d0)}, {v(vXO)}, 1, 9")
        e(f"v_cmp_eq_u32 vcc, 0, {v(d0)}")
        e(f"v_mov_b32 {v(u)}, 0xffff0000")
        e(f"v_cndmask_b32 {v(vZM)}, -1, {v(u)}, vcc")
        e(f"s_cmp_ge_u32 {s(sD2)}, 4")
        e(f"s_cselect_b32 {s(sMIR)}, 0xffff, -1")
        e(f"s_cselect_b64 {s(sM1, 2)}, -1, 0")
        e(f"s_cselect_b32 {s(sT0)}, 3, 0")
        for k in range(4):
            e(f"s_xor_b32 {s(sSK + k)}, {s(sT0)}, {k}")
            e(f"s_lshl_b32 {s(sSK + k)}, {s(sSK + k)}, 13")
        e(f"v_sub_u32 {v(tm)}, 2048, {v(t)}")
        e(f"v_and_b32 {v(tm)}, 2047, {v(tm)}")
        e(f"v_cndmask_b32 {v(tm)}, {v(t)}, {v(tm)}, {s(sM1, 2)}")
        e(f"v_lshrrev_b32 {v(u)}, 7, {v(tm)}")
        e(f"v_lshlrev_b32 {v(u)}, 9, {v(u)}")
        e(f"v_and_b32 {v(t)}, 31, {v(tm)}")
        e(f"v_lshl_add_u32 {v(u)}, {v(t)}, 4, {v(u)}")
        e(f"v_bfe_u32 {v(t)}, {v(tm)}, 5, 2")
        e(f"v_lshl_add_u32 {v(u)}, {v(t)}, 2, {v(u)}")
        e(f"v_add_u32 {v(u)}, {S_}, {v(u)}")
        for mt in range(2):
            e(f"v_lshrrev_b32 {v(t)}, 1, {v(d0)}")
            e(f"v_add_u32 {v(t)}, {16 * mt}, {v(t)}")
            e(f"v_sub_u32 {v(tm)}, 256, {v(t)}")
            e(f"v_and_b32 {v(vT + 5)}, 127, {v(tm)}")
            e(f"v_cndmask_b32 {v(vT + 5)}, {v(t)}, {v(vT + 5)}, {s(sM1, 2)}")
            e(f"v_lshl_add_u32 {v(vS0 + mt)}, {v(vT + 5)}, 13, {v(u)}")
            e(f"v_add_u32 {v(t)}, 1, {v(t)}")
            e(f"v_subrev_u32 {v(tm)}, 4, {v(tm)}")
            e(f"v_cndmask_b32 {v(vT + 5)}, {v(t)}, {v(tm)}, {s(sM1, 2)}")
            e(f"v_lshl_add_u32 {v(vS1 + mt)}, {v(vT + 5)}, 13, {v(u)}")
        e(f"s_lshl_b32 {s(sT0)}, {s(sD2)}, 5")
        e(f"v_min_u32 {v(t)}, 31, {v(vLANE)}")
        e(f"v_add_u32 {v(t)}, {s(sT0)}, {v(t)}")
        e(f"s_sub_u32 {s(sT0)}, 256, {s(sT0)}")
        e(f"v_min_u32 {v(tm)}, 32, {v(vLANE)}")
        e(f"v_sub_u32 {v(tm)}, {s(sT0)}, {v(tm)}")
        e(f"v_and_b32 {v(tm)}, 127, {v(tm)}")
        e(f"v_cndmask_b32 {v(t)}, {v(t)}, {v(tm)}, {s(sM1, 2)}")
        e(f"v_lshlrev_b32 {v(t)}, 7, {v(t)}")
        e(f"v_add_u32 {v(vFSA)}, {FS}, {v(t)}")
        e(f"s_mul_i32 {s(sT0)}, {s(sD1)}, 28")
        e(f"s_add_u32 {s(sT0)}, {s(sT0)}, {s(sF)}")
        e(f"s_lshl2_add_u32 {s(sT0)}, {s(sT0)}, {s(sW)}")
        e(f"s_lshl_b32 {s(sT0)}, {s(sT0)}, 7")
        e(f"s_add_u32 {s(sFLU)}, {s(sT0)}, {FU}")
        e(f"s_add_u32 {s(sFLU + 1)}, {s(sT0)}, {FU + 8 * 112 * 128}")

    def fu_poll_addr(self):
        e = self.e
        e(f"s_lshl2_add_u32 {s(sT0)}, {s(sD2)}, {s(sW)}")
        e(f"s_mul_i32 {s(sT0)}, {s(sT0)}, {28 * 128}")
        e(f"s_add_u32 {s(sT0)}, {s(sT0)}, {FU}")
        e(f"v_min_u32 {v(vPOLL)}, 27, {v(vLANE)}")
        e(f"v_lshl_add_u32 {v(vPOLL)}, {v(vPOLL)}, 7, {s(sT0)}")

    def red_write(self, acc):
        return [(f"ds_write_b128 {v(vRW + q - 1)}, {v(acc + 8 * q + 4 * h, 4)} offset:{1024 * h}", "red")
                for q in (2, 3, 1) for h in range(2)]

    def red_read(self, acc, pk=True):
        out = [(f"ds_read_b128 {v(acc + 8 * q + 4 * h, 4)}, {v(vRR)} offset:{2048 * (q - 1) + 1024 * h}", None)
               for q in (1, 2, 3) for h in range(2)]
        for d, o in ((0, 8), (16, 24), (0, 16)):
            if pk:
                out += [(f"v_pk_add_f32 {v(acc + d + k, 2)}, {v(acc + d + k, 2)}, {v(acc + o + k, 2)}", None)
                        for k in range(0, 8, 2)]
            else:
                out += [(f"v_add_f32 {v(acc + d + k)}, {v(acc + d + k)}, {v(acc + o + k)}", None) for k in range(8)]
        return out

    def gelu(self, acc, pk=True):
        x, t = acc, acc + 8
        k2 = -2.0 * 0.7978845608028654 * 1.4426950408889634
        R, P = range(8), range(0, 8, 2)
        o = [f"v_cvt_pk_bf16_f32 {v(x + i)}, 0, {v(x + i)}" for i in R]
        if pk:
            o += [f"v_pk_add_f32 {v(x + i, 2)}, {v(x + i, 2)}, {v(vB1 + i, 2)}" for i in P]
            o += [f"s_mov_b32 {s(sP)}, {f32(k2 * 0.044715)}", f"v_mov_b32 {v(t + 8)}, {f32(k2)}"]
            o += [f"v_cvt_pk_bf16_f32 {v(x + i)}, 0, {v(x + i)}" for i in R]
            o += [f"v_pk_mul_f32 {v(t + i, 2)}, {v(x + i, 2)}, {v(x + i, 2)}" for i in P]
            o += [f"v_pk_fma_f32 {v(t + i, 2)}, {v(t + i, 2)}, {s(sP, 2)}, {v(t + 8, 2)} op_sel_hi:[1,0,0]" for i in P]
            o += [f"v_pk_mul_f32 {v(t + i, 2)}, {v(t + i, 2)}, {v(x + i, 2)}" for i in P]
            o += [f"v_exp_f32 {v(t + i)}, {v(t + i)}" for i in R]
            o += [f"v_pk_add_f32 {v(t + i, 2)}, {v(t + i, 2)}, 1.0 op_sel_hi:[1,0]" for i in P]
            o += [f"v_rcp_f32 {v(t + i)}, {v(t + i)}" for i in R]
            o += [f"v_pk_mul_f32 {v(x + i, 2)}, {v(x + i, 2)}, {v(t + i, 2)}" for i in P]
        else:
            o += [f"v_add_f32 {v(x + i)}, {v(x + i)}, {v(vB1 + i)}" for i in R]
            o += [f"v_cvt_pk_bf16_f32 {v(x + i)}, 0, {v(x + i)}" for i in R]
            o += [f"v_mul_f32 {v(t + i)}, {v(x + i)}, {v(x + i)}" for i in R]
            o += [f"v_mov_b32 {v(t + 8)}, {f32(k2)}"]
            o += [f"v_fmamk_f32 {v(t + i)}, {v(t + i)}, {f32(k2 * 0.044715)}, {v(t + 8)}" for i in R]
            o += [f"v_mul_f32 {v(t + i)}, {v(t + i)}, {v(x + i)}" for i in R]
            o += [f"v_exp_f32 {v(t + i)}, {v(t + i)}" for i in R]
            o += [f"v_add_f32 {v(t + i)}, 1.0, {v(t + i)}" for i in R]
            o += [f"v_rcp_f32 {v(t + i)}, {v(t + i)}" for i in R]
            o += [f"v_mul_f32 {v(x + i)}, {v(x + i)}, {v(t + i)}" for i in R]
        o += [f"v_cvt_pk_bf16_f32 {v(acc + 20 + i)}, {v(x + 2 * i)}, {v(x + 2 * i + 1)}" for i in range(4)]
        return [(i, None) for i in o]

    def a_load(self, which, n, step):
        e = self.e
        mt, st = divmod(step, n)
        va = vA1 if which == 1 else vA2
        slot = RING + 4 * (step % self.c["ring"])
        e(f"buffer_load_dwordx4 {v(slot, 4)}, {v(va + mt)}, {s(sWS, 4)}, {s(sAOFF)} offen offset:{(st % 4) * 1024} sc1"
          + (" nt" if self.c["hnt"] & which else ""))
        if st % 4 == 3:
            e(f"s_add_u32 {s(sAOFF)}, {s(sAOFF)}, 4096")
            if which == 1:
                e(f"s_and_b32 {s(sAOFF)}, {s(sAOFF)}, 0x7fff")
            else:
                e(f"s_cmp_eq_u32 {s(sAOFF)}, {7 * 4096}")
                e(f"s_cselect_b32 {s(sAOFF)}, 0, {s(sAOFF)}")

    def mfma(self, which, n, step, pt):
        mt, st = divmod(step, n)
        slot = v(RING + 4 * (step % self.c["ring"]), 4)
        acc = v(ACC[mt] + 16 * pt, 16)
        w = a_(8 * st + 4 * pt, 4)
        A, B = (w, slot) if which == 1 else (slot, w)
        self.e(f"v_mfma_f32_32x32x16_bf16 {acc}, {A}, {B}, {acc if st else 0}")

    def mfma_run(self, which, n, first, last, limit, gap, skew=0):
        ring = self.c["ring"]
        seq = [(st, pt) for st in range(first, last - skew) for pt in range(2)]
        seq += [(st, pt) for pt in (1, 0) for st in range(last - skew, last)]
        for i, (st, pt) in enumerate(seq):
            self.mfma(which, n, st, pt)
            loaded = pt == 0 and first < st < last - skew and st - 1 + ring < limit
            if loaded:
                self.a_load(which, n, st - 1 + ring)
            gap(i, st, loaded)
            ph = 2 * which - 1 + st // n
            j = i
            if self.c["fine"] == ph and j % 8 == 0:
                self.stamp(24 + j // 8)

    def spend(self, fill, cycles):
        while fill:
            item = fill[0]
            if callable(item):
                cost = 0
            elif callable(item[1]):
                cost = 8
            else:
                t = item[0]
                cost = (24 if t.startswith(("ds_write", "s_barrier")) else 12 if t.startswith("ds_read") else
                        8 if t.startswith(("v_exp", "v_rcp")) else 0 if t.startswith(("s_", "pause")) else 4)
            if cost > cycles:
                return
            if not callable(item) and item[0] == "pause":
                fill.pop(0)
                return
            self.run_fill(fill, 1)
            cycles -= cost

    def run_fill(self, fill, k=10 ** 6):
        while k and fill:
            item = fill.pop(0)
            k -= 1
            if callable(item):
                item()
            elif callable(item[1]):
                item[1]()
            else:
                self.e(item[0], tag=item[1])

    def gemm1_role(self):
        e, c, A, B = self.e, self.c, self.A, self.B
        ring, gap, lead, lag = c["ring"], c["gap_c"], c["lead"], c["lag"]
        e.run_bg()
        self.w_setup(B, 2)
        e(f"s_and_b32 {s(sT3)}, {s(sT3)}, 64")
        self.tr_setup(B, sT3)
        order = [(A, p) for p in range(lead, 16)]
        k = max(0, min(len(order), c["w2_at"] - lead))
        order[k:k] = [(B, p) for p in range(min(2, c["w2_pre"]))]
        order += [(B, p) for p in range(2, c["w2_pre"])]
        free = [x for x in range(7) if x >= lead]
        inflight = list(range(lead))
        early_b = c["w2_at"] < 16
        if early_b:
            free = [x for x in free if x < 5]

        def refill():
            if not order:
                while inflight:
                    d = inflight.pop(0)
                    e.bg += self.trp(A, d)
                    free.append(A.slot[d])
                return
            st, p = order.pop(0)
            if st is B and p < 2 and early_b:
                slot = 5 + p
            else:
                while inflight and (not free or len(inflight) > lag):
                    d = inflight.pop(0)
                    e.bg += self.trp(A, d)
                    free.append(A.slot[d])
                slot = free.pop(0)
            e.bg += self.dma_items(st, p, slot, gap)
            if st is A:
                inflight.append(p)
            e.bg.append((0, refill))

        refill()
        if c["late"]:
            self.hid_consts()
        self.hid_fft()
        self.gemm_addresses()
        e.wait_lg(None)
        e("s_barrier")
        free.append(7)
        e.run_bg(c["z_pub"])
        self.publish("Z", sFLZ)
        self.stamp(4)
        self.unpack(vB1 + 4, vB1)
        e(f"s_lshr_b32 {s(sT0)}, {s(sD1)}, 1")
        e(f"s_lshl2_add_u32 {s(sT0)}, {s(sT0)}, {s(sW)}")
        e(f"s_lshl_b32 {s(sT0)}, {s(sT0)}, 13")
        e(f"s_add_u32 {s(sT0)}, {s(sT0)}, {FH}")
        e(f"v_lshlrev_b32 {v(vPOLL)}, 7, {v(vLANE)}")
        e(f"s_and_b32 {s(sAOFF)}, {s(sROT)}, 7")
        e(f"s_lshl_b32 {s(sAOFF)}, {s(sAOFF)}, 12")
        e.run_bg()
        self.stamp(5)
        self.poll_blocking([(vPA, vPOLL, s(sT0))])
        self.stamp(6)
        for st in range(ring):
            self.a_load(1, 32, st)
        self.fu_poll_addr()
        fill, dq = [], []
        for p in range(c["w2_pre"], 8):
            dq += self.dma_items(B, p, free.pop(0), 0)
        every = 62 / max(1, len(dq))
        S = dict(sent=0, ua=None, ntr=0, nxt=8)
        trq = []
        redb = self.red_write(ACC[1])

        reda = self.red_write(ACC[0])
        ust = f"buffer_store_dwordx4 {v(ACC[0] + 20, 4)}, {v(vUST)}, {s(sWS, 4)}, 0 offen sc1"

        def gap_a(i, step, loaded):
            if dq and not loaded and S["sent"] * every <= i:
                self.run_fill(dq, 1)
                S["sent"] += 1
            if c["blk"] and i >= 64 - c["skew"] + 2:
                self.run_fill(reda, 1 if len(reda) > 2 else 0)

        def gap_b(i, step, loaded):
            nonlocal fill, dq, trq
            budget = c["lite"] if step + ring <= 64 else c["fill"]
            if fill:
                if i >= 2:
                    self.spend(fill, c["fill"])
                if not fill:
                    S["ua"] = i
                    self.stamp(19)
                return
            if step + ring > 64:
                if not dq and S["nxt"] < 14 and S["ntr"] - (len(trq) + 3) // 4 >= 2 * (S["nxt"] - 8) + 3:
                    dq = self.dma_items(B, S["nxt"], B.slot[S["nxt"] - 8], 0)
                    S["nxt"] += 1
                if i % 2 or c["tail2"]:
                    self.run_fill(dq, 1)
            while S["ntr"] < 16 and S["ntr"] < step - 32 and len(trq) < 8:
                trq += self.tr_items(B, S["ntr"])
                S["ntr"] += 1
            self.spend(trq, budget)
            if i == 48 and not c["blk"]:
                e("s_barrier")
            if i == min(63, S["ua"] + 2 * c["ack_a"]):
                self.stamp(20)
                self.publish("Ua", sFLU)
                self.stamp(8)
            if i >= 64 - c["skew"] + 2:
                self.run_fill(redb, 1 if len(redb) > 2 else 0)

        self.mfma_run(1, 32, 0, 32, 64, gap_a, c["skew"] if c["blk"] else 0)
        self.run_fill(dq)
        self.stamp(7)
        if c["blk"]:
            self.run_fill(reda)
            for st in range(32 + ring - 1 - c["skew"], 32 + ring):
                self.a_load(1, 32, st)
            e.wait_lg("red")
            e("s_barrier")
            self.run_fill(self.red_read(ACC[0]) + self.gelu(ACC[0]))
            e(ust, tag="Ua")
            e("s_barrier")
            S["ua"] = 0
            self.stamp(19)
        else:
            self.a_load(1, 32, 32 + ring - 1)
            pause = [("pause", None)]
            fill = reda + pause + [lambda: e.wait_lg("red"), ("s_barrier", None)]
            rd = self.red_read(ACC[0], False)
            fill += rd[:6] + 2 * pause + rd[6:] + self.gelu(ACC[0], False) + [(ust, "Ua")]
        self.mfma_run(1, 32, 32, 64, 64, gap_b, c["skew"])
        assert not fill and S["ua"] < 48
        while S["ntr"] < 16:
            trq += self.tr_items(B, S["ntr"])
            S["ntr"] += 1
        e.bg += trq
        nxt = S["nxt"]
        self.stamp(9)
        e.bg += [(6, f) for _, f in dq]
        while nxt < 14:
            e.bg += self.dma_items(B, nxt, B.slot[nxt - 8], 6)
            nxt += 1
        self.run_fill(redb)
        e.wait_lg("red")
        e("s_barrier")
        rest = self.red_read(ACC[1]) + self.gelu(ACC[1])
        self.run_fill(rest, len(rest) - 30)
        e.run_bg()
        e(f"buffer_load_dword {v(vPA)}, {v(vPOLL)}, {s(sWS, 4)}, 0 offen sc1")
        self.run_fill(rest)
        e(f"s_mov_b32 {s(sT3)}, 114688")
        e(f"buffer_store_dwordx4 {v(ACC[1] + 20, 4)}, {v(vUST)}, {s(sWS, 4)}, {s(sT3)} offen sc1", tag="Ub")
        e("s_barrier")
        self.mod7(sAOFF)
        e(f"s_lshl_b32 {s(sAOFF)}, {s(sAOFF)}, 12")
        self.stamp(10)
        self.poll_check([(vPA, vPOLL, "0")], lambda: self.publish("Ub", sFLU + 1))
        self.stamp(21)
        for st in range(16, 28):
            self.run_fill(self.tr_items(B, st))
            self.a_load(2, 28, st - 16)

    def fft_role(self):
        e, c = self.e, self.c
        sEP = sF
        A = self.A
        e.run_bg()
        q = []
        for p in range(c["lead"], c["f_pre"]):
            q += self.dma_items(A, p, p, c["gap_f"], cold=True)
        if c["late"]:
            self.hid_consts()
        self.hid_fft()
        q.insert(4, (1, lambda: (self.publish("Z", sFLZ), self.stamp(4))))
        e.bg += q[:16]
        self.gemm_addresses()
        e.wait_lg(None)
        e("s_barrier")
        e.bg += q[16:]
        e(f"s_lshl2_add_u32 {s(sEP)}, {s(sT)}, {s(sW)}")
        ZIN, B1, A2 = 128, 192, 224
        TW = 160
        th, c0, s0, pk = 64, 72, 80, 88
        lo, hi, fr, base = vT, vT + 1, vT + 2, vT + 3
        e(f"v_and_b32 {v(lo)}, 31, {v(vLANE)}")
        e(f"v_lshrrev_b32 {v(hi)}, 5, {v(vLANE)}")
        e(f"v_cvt_f32_ubyte0 {v(lo)}, {v(lo)}")
        e(f"v_cvt_f32_ubyte0 {v(hi)}, {v(hi)}")
        e(f"v_mul_f32 {v(fr)}, {f32(1 / 32)}, {v(lo)}")
        e(f"v_mul_f32 {v(base)}, {f32(-0.25)}, {v(hi)}")
        for bq in range(4):
            for i in range(8):
                e(f"v_fmamk_f32 {v(th + i)}, {v(fr)}, {f32(8 * bq + i)}, {v(base)}")
            for i in range(8):
                e(f"v_cos_f32 {v(c0 + i)}, {v(th + i)}")
                e(f"v_sin_f32 {v(s0 + i)}, {v(th + i)}")
            for i in range(4):
                e(f"v_cvt_pk_bf16_f32 {v(pk + i)}, {v(c0 + 2 * i)}, {v(c0 + 2 * i + 1)}")
                e(f"v_cvt_pk_bf16_f32 {v(pk + 4 + i)}, -{v(s0 + 2 * i)}, -{v(s0 + 2 * i + 1)}")
            for i in range(8):
                e(f"v_accvgpr_write_b32 {a_(B1 + 8 * bq + i)}, {v(pk + i)}")
        e(f"v_mul_f32 {v(fr)}, {f32(1 / 64)}, {v(lo)}")
        e(f"v_mul_f32 {v(base)}, 4.0, {v(hi)}")
        e(f"v_mul_f32 {v(base)}, {v(base)}, {v(fr)}")
        for tm in range(4):
            order = [(0, 0), (0, 2), (1, 0), (1, 2), (0, 1), (0, 3), (1, 1), (1, 3)]
            for i, (i0, j) in enumerate(order):
                e(f"v_fmamk_f32 {v(th + i)}, {v(fr)}, {f32(16 * tm + 8 * i0 + j)}, {v(base)}")
            for i in range(8):
                e(f"v_cos_f32 {v(c0 + i)}, {v(th + i)}")
                e(f"v_sin_f32 {v(s0 + i)}, {v(th + i)}")
            for par in range(2):
                for k in range(2):
                    o = 4 * par + 2 * k
                    e(f"v_cvt_pk_bf16_f32 {v(pk + 4 * par + k)}, {v(c0 + o)}, {v(c0 + o + 1)}")
                    e(f"v_cvt_pk_bf16_f32 {v(pk + 4 * par + 2 + k)}, {v(s0 + o)}, {v(s0 + o + 1)}")
            for i in range(8):
                e(f"v_accvgpr_write_b32 {a_(A2 + 8 * tm + i)}, {v(pk + i)}")
        e(f"v_mul_f32 {v(fr)}, {f32(1 / 2048)}, {v(lo)}")
        e(f"v_mul_f32 {v(base)}, 4.0, {v(hi)}")
        e(f"v_mul_f32 {v(base)}, {v(base)}, {v(fr)}")
        for tm in range(4):
            for i in range(8):
                e(f"v_fmamk_f32 {v(th + i)}, {v(fr)}, {f32(16 * tm + 8 * (i // 4) + i % 4)}, {v(base)}")
            for i in range(8):
                e(f"v_cos_f32 {v(TW + 16 * tm + i)}, {v(th + i)}")
                e(f"v_sin_f32 {v(TW + 16 * tm + 8 + i)}, {v(th + i)}")
        e.run_bg()
        self.stamp(5)
        e(f"s_lshr_b32 {s(sT0)}, {s(sEP)}, 5")
        e(f"s_lshl_b32 {s(sT0)}, {s(sT0)}, 15")
        e(f"s_add_u32 {s(sT0)}, {s(sT0)}, {FZ}")
        e(f"s_add_u32 {s(sT1)}, {s(sT0)}, 8192")
        e(f"s_add_u32 {s(sT2)}, {s(sT0)}, 16384")
        e(f"s_add_u32 {s(sT3)}, {s(sT0)}, 24576")
        e(f"v_lshlrev_b32 {v(vPOLL)}, 7, {v(vLANE)}")
        za = vT + 4
        e(f"v_and_b32 {v(za)}, 15, {v(vLANE)}")
        e(f"v_lshlrev_b32 {v(za)}, 6, {v(za)}")
        e(f"v_bfe_u32 {v(za + 1)}, {v(vLANE)}, 4, 1")
        e(f"v_lshl_add_u32 {v(za)}, {v(za + 1)}, 5, {v(za)}")
        e(f"v_lshrrev_b32 {v(za + 1)}, 5, {v(vLANE)}")
        e(f"v_lshl_add_u32 {v(za)}, {v(za + 1)}, 4, {v(za)}")
        self.poll_blocking([(vT + 8 + k, vPOLL, s(sT0 + k)) for k in range(4)])
        self.stamp(6)
        e(f"s_lshl_b32 {s(sT0)}, {s(sEP)}, 14")
        e(f"s_add_u32 {s(sT0)}, {s(sT0)}, {Z_}")
        for k in range(1, 4):
            e(f"s_add_u32 {s(sT0 + k)}, {s(sT0)}, {4096 * k}")
        for tm in range(4):
            for bq in range(4):
                e(f"buffer_load_dwordx4 {a_(ZIN + 16 * tm + 4 * bq, 4)}, {v(za)}, {s(sWS, 4)}, {s(sT0 + bq)} offen"
                  f" offset:{1024 * tm} sc1")
        skip = self.lab("non")
        e(f"s_cmp_lg_u32 {s(sEP)}, 0")
        e(f"s_cbranch_scc1 {skip}")
        st = e.state()
        e(f"s_mov_b32 {s(sCNT)}, 0")
        self.flag_store(sCNT)
        e.wait_all(lg=False)
        e.restore(st)
        e.label(skip)
        M = "v_mfma_f32_32x32x16_bf16"
        AC1 = (64, 224)
        AC2 = 96
        Ur, Bf = vT, vB1

        def stage1(tm):
            r = AC1[tm % 2]
            return [(f"{M} {v(r + 16 * part, 16)}, {a_(ZIN + 16 * tm + 4 * bq, 4)}, {a_(B1 + 8 * bq + 4 * part, 4)}, "
                     f"{v(r + 16 * part, 16) if bq else 0}", None) for bq in range(4) for part in range(2)]

        def twiddle(tm, e2):
            r = AC1[tm % 2] + 8 * e2
            im = r + 16
            cs, sn = TW + 16 * tm, TW + 16 * tm + 8
            o = []
            o += [f"v_mul_f32 {v(Ur + k)}, {v(r + k)}, {v(cs + k)}" for k in range(8)]
            o += [f"v_mul_f32 {v(Ur + 8 + k)}, {v(im + k)}, {v(cs + k)}" for k in range(8)]
            o += [f"v_fmac_f32 {v(Ur + k)}, {v(im + k)}, {v(sn + k)}" for k in range(8)]
            o += [f"v_fma_f32 {v(Ur + 8 + k)}, -{v(r + k)}, {v(sn + k)}, {v(Ur + 8 + k)}" for k in range(8)]
            for par in range(2):
                for part in range(2):
                    for i0 in range(2):
                        x = Ur + 8 * part + 4 * i0 + par
                        o.append(f"v_cvt_pk_bf16_f32 {v(Bf + 4 * par + 2 * part + i0)}, {v(x)}, {v(x + 2)}")
            for par in range(2):
                acc = v(AC2 + 32 * e2 + 16 * par, 16)
                o.append(f"{M} {acc}, {a_(A2 + 8 * tm + 4 * par, 4)}, {v(Bf + 4 * par, 4)}, {acc if tm else 0}")
            return [(i, None) for i in o]

        for p in range(c["f_pre"], 8):
            e.bg += self.dma_items(A, p, p, c["gap_f"])
        self.run_fill(stage1(0), 99)
        for tm in range(4):
            m = stage1(tm + 1) if tm < 3 else []
            work = twiddle(tm, 0) + twiddle(tm, 1)
            while work or m:
                self.run_fill(m, 1)
                self.run_fill(work, 7)
        e.run_bg()
        self.stamp(7)
        e(f"s_lshl_b32 {s(sT0)}, {s(sEP)}, 13")
        e(f"s_add_u32 {s(sT0)}, {s(sT0)}, {S_}")
        e(f"s_add_u32 {s(sT1)}, {s(sT0)}, 4096")
        e(f"v_lshlrev_b32 {v(za)}, 4, {v(vLANE)}")
        out = 64
        for i in range(4):
            for t2 in range(2):
                neg = " neg_lo:[0,1] neg_hi:[0,1]" if t2 else ""
                for j in (0, 2):
                    k = 4 * i + j
                    e(f"v_pk_add_f32 {v(Ur + 8 + j, 2)}, {v(AC2 + k, 2)}, {v(AC2 + 16 + k, 2)}{neg}")
                    e(f"v_pk_add_f32 {v(Ur + 12 + j, 2)}, {v(AC2 + 32 + k, 2)}, {v(AC2 + 48 + k, 2)}{neg}")
                o = out + 4 * (2 * i + t2)
                for j in range(4):
                    e(f"v_cvt_pk_bf16_f32 {v(o + j)}, {v(Ur + 8 + j)}, {v(Ur + 12 + j)}")
                e(f"buffer_store_dwordx4 {v(o, 4)}, {v(za)}, {s(sWS, 4)}, {s(sT0 + t2)} offen offset:{1024 * i} sc1", tag="S")
        for p in range(8):
            self.run_fill(self.trp(A, p))
            if 0 < p < 7:
                self.run_fill(self.dma_items(A, p + 7, p - 1, 0))
        e(f"s_lshl_b32 {s(sT2)}, {s(sEP)}, 7")
        e(f"s_add_u32 {s(sFLU + 1)}, {s(sT2)}, {FS}")
        self.fu_poll_addr()
        self.mod7(sAOFF)
        e(f"s_lshl_b32 {s(sAOFF)}, {s(sAOFF)}, 12")
        self.publish("S", sFLU + 1)
        self.x_tile()
        self.stamp(9)
        for st in range(16, 28):
            self.run_fill(self.tr_items(A, st))
        self.poll_blocking([(vPA, vPOLL, "0")])
        self.stamp(10)
        self.stamp(None)
        e.wait_all()
        for st in range(12):
            self.a_load(2, 28, st)

    def gate(self, mt, pk=True):
        e = self.e
        y, t = ACC[mt], ACC[mt] + 8
        R = range(8)
        o = self.red_write(y) + [lambda: e.wait_lg("red"), ("s_barrier", None)] + self.red_read(y, pk)
        p = [f"v_permlane32_swap_b32 {v(y + j)}, {v(y + 4 + j)}" for j in range(4)]
        p += [f"v_cvt_pk_bf16_f32 {v(y + i)}, 0, {v(y + i)}" for i in R]
        P = range(0, 8, 2)
        nl2e = f32(-1.4426950408889634)
        if pk:
            p += [f"v_pk_add_f32 {v(y + i, 2)}, {v(y + i, 2)}, {v(vB2 - 1, 2)} op_sel:[0,1] op_sel_hi:[1,1]" for i in P]
            p += [f"s_mov_b32 {s(sP)}, {nl2e}"]
            p += [f"v_cvt_pk_bf16_f32 {v(y + i)}, 0, {v(y + i)}" for i in R]
            p += [f"v_pk_mul_f32 {v(t + i, 2)}, {v(y + i, 2)}, {s(sP, 2)} op_sel_hi:[1,0]" for i in P]
            p += [f"v_exp_f32 {v(t + i)}, {v(t + i)}" for i in R]
            p += [f"v_pk_add_f32 {v(t + i, 2)}, {v(t + i, 2)}, 1.0 op_sel_hi:[1,0]" for i in P]
            p += [f"v_rcp_f32 {v(t + i)}, {v(t + i)}" for i in R]
            p += [f"v_pk_mul_f32 {v(y + i, 2)}, {v(y + i, 2)}, {v(t + i, 2)}" for i in P]
        else:
            p += [f"v_add_f32 {v(y + i)}, {v(y + i)}, {v(vB2)}" for i in R]
            p += [f"v_cvt_pk_bf16_f32 {v(y + i)}, 0, {v(y + i)}" for i in R]
            p += [f"v_mul_f32 {v(t + i)}, {nl2e}, {v(y + i)}" for i in R]
            p += [f"v_exp_f32 {v(t + i)}, {v(t + i)}" for i in R]
            p += [f"v_add_f32 {v(t + i)}, 1.0, {v(t + i)}" for i in R]
            p += [f"v_rcp_f32 {v(t + i)}, {v(t + i)}" for i in R]
            p += [f"v_mul_f32 {v(y + i)}, {v(y + i)}, {v(t + i)}" for i in R]
        p += [f"v_cvt_pk_bf16_f32 {v(y + i)}, 0, {v(y + i)}" for i in R]
        return o + [(i, None) for i in p]

    def operands(self, mt, dst):
        X, W = vE + 12 * mt, vE + 12 * mt + 4
        p = [f"v_bfi_b32 {v(W + k)}, {s(sMIR)}, {v(W + k)}, {v(W + k + 1)}" for k in range(4)]
        if mt == 0:
            p.append(f"v_and_b32 {v(W)}, {v(W)}, {v(vZM)}")
        for src, d in ((W, dst), (X, dst + 8)):
            for k in range(4):
                p.append(f"v_lshlrev_b32 {v(d + 2 * k)}, 16, {v(src + k)}")
                p.append(f"v_and_b32 {v(d + 2 * k + 1)}, 0xffff0000, {v(src + k)}")
        return [(i, None) for i in p]

    def finish(self, mt, src, pk=True):
        y, X = ACC[mt], vE + 12 * mt
        def two(op, o):
            if pk:
                return [f"v_pk_{op}_f32 {v(y + i, 2)}, {v(y + i, 2)}, {v(o + i, 2)}" for i in range(0, 8, 2)]
            return [f"v_{op}_f32 {v(y + i)}, {v(y + i)}, {v(o + i)}" for i in range(8)]
        p = two("mul", src)
        p += [f"v_cvt_pk_bf16_f32 {v(y + i)}, 0, {v(y + i)}" for i in range(8)]
        p += two("add", src + 8)
        p += [f"v_cvt_pk_bf16_f32 {v(X + k)}, {v(y + 2 * k)}, {v(y + 2 * k + 1)}" for k in range(4)]
        p += [f"buffer_store_dwordx4 {v(X, 4)}, {v(vXO)}, {s(sOUT, 4)}, 0 offen offset:{64 * mt}" + (" nt" if self.c["nt_out"] else "")]
        return [(i, None) for i in p]

    def gemm2(self):
        e, c = self.e, self.c
        ring = c["ring"]
        for st in range(12, ring):
            self.a_load(2, 28, st)
        e(f"v_lshlrev_b32 {v(vB2)}, 16, {v(vB2)}")
        e(f"s_mov_b32 {s(sT2)}, {8 * 112 * 128}")
        self.publish("Ub", sFLU + 1)
        self.stamp(11)

        def gap_a(i, step, loaded):
            if i == 45:
                e(f"buffer_load_dword {v(vPA)}, {v(vPOLL)}, {s(sWS, 4)}, {s(sT2)} offen sc1")
            if i == 47:
                e(f"buffer_load_dword {v(vPB)}, {v(vFSA)}, {s(sWS, 4)}, 0 offen sc1")

        self.mfma_run(2, 28, 0, 28, 28, gap_a)
        self.stamp(12)
        self.poll_check([(vPA, vPOLL, s(sT2)), (vPB, vFSA, "0")])
        self.stamp(13)
        first = self.gate(0, False)
        for stp in range(28, 28 + ring):
            self.a_load(2, 28, stp)
            if stp >= 28 + c["b_red"]:
                self.run_fill(first, 1)
        for mt in range(2):
            W = vE + 12 * mt + 4
            e(f"buffer_load_dword {v(W)}, {v(vS0 + mt)}, {s(sWS, 4)}, 0 offen sc1")
            for k in range(4):
                e(f"buffer_load_dword {v(W + 1 + k)}, {v(vS1 + mt)}, {s(sWS, 4)}, {s(sSK + k)} offen sc1")
        self.run_fill(first, c["b_pre"])
        self.stamp(14)
        fill = first + self.operands(0, ACC[0] + 8) + self.finish(0, ACC[0] + 8, False) + self.operands(1, vT)
        last = self.gate(1)

        def gap_b(i, step, loaded):
            if i == 44:
                e("s_barrier")
            self.spend(fill, c["lite"] if step + ring <= 56 else c["fill"])
            if 56 - c["skew"] + 2 <= i < 56 - c["skew"] + 6:
                self.run_fill(last, 1)

        self.mfma_run(2, 28, 28, 56, 56, gap_b, c["skew"])
        self.run_fill(fill)
        self.stamp(15)
        self.run_fill(last + self.finish(1, vT))
        self.stamp(16)

    def build(self):
        e, c = self.e, self.c
        self.prologue()
        if not c["late"]:
            self.hid_consts()
        self.phase1()
        e(f"s_cmp_eq_u32 {s(sD2)}, 7")
        e("s_cbranch_scc1 L_fft")
        st = e.state()
        pend = self.pending
        self.gemm1_role()
        self.stamp(None)
        end1 = e.state()
        self.pending = pend
        e("s_branch L_gemm2")
        e.restore(st)
        e.label("L_fft")
        self.fft_role()
        e.restore(end1)
        e.label("L_gemm2")
        self.gemm2()
        if c["diag"]:
            e.wait_all()
            self.stamp(17)
            self.stamp(23)
            self.stamp(None)
            e(f"s_lshl_b32 {s(sT0)}, s2, 2")
            e(f"s_add_u32 {s(sT0)}, {s(sT0)}, {s(sW)}")
            e(f"s_lshl_b32 {s(sT0)}, {s(sT0)}, 8")
            e(f"s_add_u32 {s(sT0)}, {s(sT0)}, {DG}")
            e(f"v_lshlrev_b32 {v(vT)}, 2, {v(vLANE)}")
            e(f"buffer_store_dword {v(vSTAMP)}, {v(vT)}, {s(sWS, 4)}, {s(sT0)} offen")
        if c["dbg"]:
            e(f"s_load_dwordx2 {s(sCODE, 2)}, s[0:1], 88")
            e(f"s_mov_b32 {s(sCODE + 2)}, 256")
            e(f"s_mov_b32 {s(sCODE + 3)}, 0x20000")
            e(f"v_not_b32 {v(vT + 1)}, {v(vSTAMP)}")
            e(f"v_cmp_eq_u32 vcc, 0, {v(vLANE)}")
            e(f"v_readlane_b32 {s(sT0)}, {v(vSTAMP)}, 0")
            e(f"v_cndmask_b32 {v(vT + 1)}, {v(vSTAMP)}, {v(vT + 1)}, vcc")
            e(f"v_writelane_b32 {v(vT + 1)}, {s(sT0)}, 8")
            e(f"v_readlane_b32 {s(sT0)}, {v(vSTAMP)}, 17")
            e(f"s_nop 3")
            e(f"v_writelane_b32 {v(vT + 1)}, {s(sT0)}, 15")
            e.wait_all()
            e("s_mov_b64 exec, 0xffff")
            e(f"buffer_atomic_umax {v(vT + 1)}, {v(vT)}, {s(sCODE, 4)}, 0 offen sc1")
            e.wait_all()
        e.label("L_end")
        e("s_endpgm")
        e.label("L_code_end")
        head = open(f"cdna_kernels/{NAME}.s.ref").read().split("; Override")[0]
        return (head + "; @launch grid=(256,1,1) block=(256,1,1) lds=163840\n"
                '.amdgcn_target "amdgcn-amd-amdhsa--gfx950"\n.text\n'
                f".globl {NAME}_kernel\n.p2align 8\n.type {NAME}_kernel,@function\n{NAME}_kernel:\n"
                + e.text() +
                '.section .rodata,"a"\n.p2align 6\n'
                f".amdhsa_kernel {NAME}_kernel\n"
                "  .amdhsa_next_free_vgpr 512\n  .amdhsa_next_free_sgpr 102\n  .amdhsa_accum_offset 256\n"
                "  .amdhsa_group_segment_fixed_size 0\n  .amdhsa_kernarg_size 104\n  .amdhsa_user_sgpr_count 2\n"
                "  .amdhsa_user_sgpr_kernarg_segment_ptr 1\n  .amdhsa_system_sgpr_workgroup_id_x 1\n"
                ".end_amdhsa_kernel\n")


if __name__ == "__main__":
    out = sys.argv[1]
    kw = {k: int(x) for k, x in (a.split("=") for a in sys.argv[2:])}
    g = Gen(**kw)
    open(out, "w").write(g.build())
    print(out, "instructions:", g.e.n)
```
